```python
import torch

def _softmax(x, axis=-1):
    return torch.softmax(x, dim=axis)
def _gelu(x):
    return torch.nn.functional.gelu(x, approximate="tanh")
def _silu(x):
    return torch.nn.functional.silu(x)
def _sigmoid(x):
    return torch.sigmoid(x)
def _layernorm(x, axis=-1, eps=1e-5):
    m = x.mean(dim=axis, keepdim=True)
    v = x.var(dim=axis, keepdim=True, unbiased=False)
    return (x - m) / torch.sqrt(v + eps)
def _scatter_add(tgt, idx, src, axis=0):
    return tgt.clone().index_add_(axis, idx, src)
def _segment_sum(src, seg, n):
    out = torch.zeros((n,) + src.shape[1:], dtype=src.dtype)
    return out.index_add_(0, seg, src)
def _pad(x, pw):
    flat = tuple(v for pair in reversed(pw) for v in pair)
    return torch.nn.functional.pad(x, flat)

kernel_name = 'concat_heads__sliding_local_dilated__spectral_fnet__prompt'

def setup_inputs():

    _w = (lambda a: (lambda t: t.to(torch.bfloat16) if t.is_floating_point() else t)(torch.as_tensor(a)))
    def _A_setup():
        B, S, D = 1, 2048, 640
        return {
            "x": _w((lambda *s: torch.randn(*s, dtype=torch.bfloat16) * 0.2)(B, S, D)),
            "wqkv": _w((lambda *s: torch.randn(*s, dtype=torch.bfloat16) * 0.8)(D, 3 * D)),
            "wo": _w((lambda *s: torch.randn(*s, dtype=torch.bfloat16) * 0.2)(D, D)),
        }
    _A_in = _A_setup()

    def _B_setup():
        B, S, D = 1, 2048, 640
        ns = torch.arange(S)[:, None] * torch.arange(S)[None, :]
        nd = torch.arange(D)[:, None] * torch.arange(D)[None, :]
        Ws_re = torch.cos(-2.0 * torch.pi * ns / S).to(float)
        Ws_im = torch.sin(-2.0 * torch.pi * ns / S).to(float)
        Wd_re = torch.cos(-2.0 * torch.pi * nd / D).to(float)
        Wd_im = torch.sin(-2.0 * torch.pi * nd / D).to(float)
        return {
            "x": _w((lambda *s: torch.randn(*s, dtype=torch.bfloat16) * 0.05)(B, S, D)),
            "dft_seq_re": _w(Ws_re),
            "dft_seq_im": _w(Ws_im),
            "dft_hid_re": _w(Wd_re),
            "dft_hid_im": _w(Wd_im),
        }
    _B_in = _B_setup()

    return {
        "A_x": _A_in["x"],
        "A_wqkv": _A_in["wqkv"],
        "A_wo": _A_in["wo"],
        "B_x": _B_in["x"],
        "B_dft_seq_re": _B_in["dft_seq_re"],
        "B_dft_seq_im": _B_in["dft_seq_im"],
        "B_dft_hid_re": _B_in["dft_hid_re"],
        "B_dft_hid_im": _B_in["dft_hid_im"],
    }

def reference(A_x, A_wqkv, A_wo, B_x, B_dft_seq_re, B_dft_seq_im, B_dft_hid_re, B_dft_hid_im):
    def _A_ref(x, wqkv, wo):
        B, S, D = x.shape
        H = 32; Dh = D // H
        W, dil = 8, 2
        qkv = (lambda x, *d: x.permute(*d))((x @ wqkv).reshape(B, S, 3, H, Dh), 2, 0, 3, 1, 4)
        q, k, v = qkv[0], qkv[1], qkv[2]
        scale = Dh ** -0.5
        pos = torch.arange(S)
        off = torch.arange(W) * dil
        idx = pos[:, None] - off[None, :]
        mask = idx >= 0
        idx_c = torch.where(mask, idx, 0).reshape(-1)
        kg = k[:, :, idx_c, :].reshape(B, H, S, W, Dh)
        vg = v[:, :, idx_c, :].reshape(B, H, S, W, Dh)
        logits = torch.einsum("bhsd,bhswd->bhsw", q, kg) * scale
        logits = torch.where(mask[None, None, :, :], logits, -1e9)
        attn = _softmax(logits, axis=-1)
        o = torch.einsum("bhsw,bhswd->bhsd", attn, vg)
        return (lambda x, *d: x.permute(*d))(o, 0, 2, 1, 3).reshape(B, S, D) @ wo

    def _B_ref(x, dft_seq_re, dft_seq_im, dft_hid_re, dft_hid_im):
        a = torch.einsum("bsd,ed->bse", x, dft_hid_re)
        b = torch.einsum("bsd,ed->bse", x, dft_hid_im)
        y = torch.einsum("ts,bse->bte", dft_seq_re, a) - torch.einsum("ts,bse->bte", dft_seq_im, b)
        return y

    a = _A_ref(A_x, A_wqkv, A_wo)
    b = _B_ref(B_x, B_dft_seq_re, B_dft_seq_im, B_dft_hid_re, B_dft_hid_im)
    return torch.concatenate([a, b], axis=-1)
```

```python
import re, struct

TRANS = ('v_exp_f32', 'v_log_f32', 'v_rcp_f32', 'v_rsq_f32', 'v_sqrt_f32', 'v_sin_f32', 'v_cos_f32', 'v_rcp_iflag_f32')


def f2u(x):
    return struct.unpack('<I', struct.pack('<f', x))[0]


def fh(x):
    return '0x%08x' % f2u(x)


def vr(a, n=1):
    return f'v{a}' if n == 1 else f'v[{a}:{a + n - 1}]'


def sr(a, n=1):
    return f's{a}' if n == 1 else f's[{a}:{a + n - 1}]'


_REG = re.compile(r'^-?\|?(?:abs\()?([vsa])(?:(\d+)|\[(\d+):(\d+)\])\)?\|?$')


def regs(tok):
    tok = tok.strip()
    if tok == 'vcc':
        return {('s', 106), ('s', 107)}
    if tok == 'vcc_lo':
        return {('s', 106)}
    if tok == 'exec':
        return {('s', 126), ('s', 127)}
    if tok == 'exec_lo':
        return {('s', 126)}
    if tok == 'exec_hi':
        return {('s', 127)}
    if tok == 'm0':
        return {('s', 124)}
    m = _REG.match(tok)
    if not m:
        return set()
    k = m.group(1)
    if m.group(2) is not None:
        lo = hi = int(m.group(2))
    else:
        lo, hi = int(m.group(3)), int(m.group(4))
    if k == 'a':
        return {('v', 256 + i) for i in range(lo, hi + 1)}
    return {(k, i) for i in range(lo, hi + 1)}


class Ins:
    def __init__(self, text):
        self.text = text
        t = text.split(';')[0].strip()
        self.label = t.endswith(':')
        self.kind = 'other'
        self.wr = set(); self.rd = set()
        self.states = 1
        self.op = ''
        if not t or self.label or t.startswith('.'):
            self.states = 0
            self.kind = 'none'
            return
        parts = t.split(None, 1)
        op = self.op = parts[0]
        rest = parts[1] if len(parts) > 1 else ''
        ops = [x.strip() for x in re.split(r',(?![^\[]*\])', rest)] if rest else []
        mods = ''
        if ops:
            sp = ops[-1].split(None, 1)
            ops[-1] = sp[0]
            mods = sp[1] if len(sp) > 1 else ''
        self.mods = mods
        R = [regs(x) for x in ops]
        U = lambda l: set().union(*l) if l else set()
        if op == 's_nop':
            self.states = int(ops[0], 0) + 1
            self.kind = 'nop'
        elif op.startswith('v_mfma'):
            self.kind = 'mfma'
            self.passes = 2 if '4x4x4' in op else (8 if '32x32' in op else 4)
            self.wr = R[0]; self.ab = R[1] | R[2]; self.c = R[3]; self.rd = self.ab | self.c
        elif op.startswith('v_cmp'):
            self.kind = 'valu'; self.wr = R[0]; self.rd = U(R[1:])
        elif op.startswith('v_readfirstlane') or op.startswith('v_readlane'):
            self.kind = 'valu'; self.wr = R[0]; self.rd = U(R[1:]); self.lane_read = True
        elif op.startswith('v_permlane') or op.startswith('v_swap'):
            self.kind = 'valu'; self.wr = R[0] | R[1]; self.rd = R[0] | R[1]
        elif op.startswith('v_add_co') or op.startswith('v_addc_co') or op.startswith('v_sub_co') or op.startswith('v_subb_co'):
            self.kind = 'valu'; self.wr = R[0] | R[1]; self.rd = U(R[2:])
        elif op.startswith('v_'):
            self.kind = 'valu'; self.wr = R[0]; self.rd = U(R[1:])
            if op.startswith(('v_fmac', 'v_dot2c', 'v_mac')):
                self.rd |= R[0]
            if op.startswith('v_cndmask') and len(ops) == 3:
                self.rd |= regs('vcc')
        elif op.startswith('ds_'):
            self.kind = 'ds'
            if op.startswith('ds_read') or op.startswith('ds_bpermute'):
                self.wr = R[0]; self.rd = U(R[1:])
            else:
                self.rd = U(R)
        elif op.startswith(('buffer_', 'global_')):
            self.kind = 'vmem'
            self.lds = ' lds' in (' ' + mods)
            if 'load' in op and not self.lds:
                self.wr = R[0]; self.rd = U(R[1:])
            elif 'atomic' in op and 'sc0' in mods:
                self.wr = R[0]; self.rd = U(R)
            else:
                self.rd = U(R)
            if self.lds:
                self.rd |= regs('m0')
            self.wide = set()
            if 'store' in op and ('x3' in op or 'x4' in op):
                self.wide = R[0] if op.startswith('buffer_') else R[1]
        elif op.startswith(('s_load', 's_memtime', 's_memrealtime', 's_buffer_load')):
            self.kind = 'smem'; self.wr = R[0]; self.rd = U(R[1:])
        elif op.startswith(('s_waitcnt', 's_barrier', 's_branch', 's_cbranch', 's_endpgm', 's_sleep', 's_setprio')):
            self.kind = 'ctl'
        elif op.startswith('s_cmp'):
            self.kind = 'salu'; self.rd = U(R)
        elif op.startswith('s_'):
            self.kind = 'salu'; self.wr = R[0]; self.rd = U(R[1:])
            if 'saveexec' in op:
                self.wr |= regs('exec')
        self.trans = op.replace('_e32', '').replace('_e64', '') in TRANS
        self.dot = op.startswith('v_dot')


def need(p, c):
    V = lambda s: {x for x in s if x[0] == 'v'}
    S = lambda s: {x for x in s if x[0] == 's'}
    n = 0
    if p.kind == 'valu':
        pv, ps = V(p.wr), S(p.wr)
        if c.kind == 'mfma' and pv & c.rd:
            n = max(n, 3 if p.dot else 2)
        if c.kind == 'valu':
            if pv & c.rd:
                if getattr(c, 'lane_read', False): n = max(n, 1)
                if c.op.startswith('v_permlane') or 'dpp' in c.op or 'row_' in getattr(c, 'mods', ''): n = max(n, 2)
                if p.trans and not c.trans: n = max(n, 1)
            if p.dot and pv & (c.rd | c.wr) and not (c.op == p.op and pv == V(c.wr) and not (pv & (c.rd - c.wr))):
                n = max(n, 3)
            if ps & c.rd:
                n = max(n, 4 if getattr(c, 'lane_read', False) else 2)
        if c.kind == 'vmem' and ps & c.rd: n = max(n, 5)
        if c.kind in ('salu', 'smem') and ps & c.rd: n = max(n, 3)
        if p.dot and c.kind in ('ds', 'vmem') and pv & c.rd: n = max(n, 3)
    if p.kind == 'mfma':
        if c.kind == 'mfma':
            if p.wr & c.ab: n = max(n, {2: 5, 4: 8, 8: 12}[p.passes])
            if p.wr & c.c:
                if p.wr == c.c and p.passes == c.passes: n = max(n, 2 if p.passes == 2 else 0)
                else: n = max(n, {2: 4, 4: 6, 8: 10}[p.passes])
            elif p.wr & c.wr: n = max(n, {2: 4, 4: 6, 8: 10}[p.passes])
        elif c.kind in ('valu', 'ds', 'vmem') and p.wr & (c.rd | c.wr):
            n = max(n, {2: 5, 4: 8, 8: 12}[p.passes])
        if c.kind == 'valu' and p.c & c.wr: n = max(n, {2: 1, 4: 3, 8: 7}[p.passes])
    if p.kind == 'salu' and ('s', 124) in p.wr and c.kind == 'vmem' and c.lds: n = max(n, 1)
    if p.kind == 'vmem' and p.wide and p.wide & c.wr:
        n = max(n, 2 if c.kind in ('valu', 'mfma') else 1)
    return n


class Prog:
    def __init__(self):
        self.ins = []
        self.vm = []
        self.lg = []
        self.nops = 0

    def __call__(self, text, tag=None):
        for line in text.split('\n'):
            line = line.strip()
            if not line:
                continue
            i = Ins(line)
            if i.kind not in ('none', 'nop'):
                dist = 0; pad = 0
                for p in reversed(self.ins):
                    if dist >= 20: break
                    if p.kind not in ('none', 'nop'):
                        pad = max(pad, need(p, i) - dist)
                    dist += p.states
                if pad > 0:
                    self.ins.append(Ins(f's_nop {pad - 1}')); self.nops += 1
            self.ins.append(i)
            if i.kind == 'vmem': self.vm.append(tag)
            if i.kind == 'ds': self.lg.append(tag)

    def _after(self, lst, tags):
        if isinstance(tags, str): tags = [tags]
        last = -1
        for t in tags:
            idx = [k for k, x in enumerate(lst) if x == t]
            assert idx, f'no op tagged {t}'
            last = max(last, idx[-1])
        return len(lst) - 1 - last

    def wait(self, vm=None, lg=None):
        s = []
        if vm is not None:
            n = 0 if vm == 'all' else self._after(self.vm, vm)
            assert n <= 63, n
            s.append(f'vmcnt({n})')
        if lg is not None:
            n = 0 if lg == 'all' else min(self._after(self.lg, lg), 15)
            s.append(f'lgkmcnt({n})')
        self('s_waitcnt ' + ' '.join(s))

    def text(self):
        out = []
        for i in self.ins:
            out.append(i.text if (i.label or i.text.startswith('.')) else '    ' + i.text)
        return '\n'.join(out) + '\n'
```

```python
import sys, math
from asmlib import *

KN = 'concat_heads__sliding_local_dilated__spectral_fnet__prompt'
WS_O, WS_G, WS_EX, WS_FO, WS_FG, WS_TS, WS_SIZE = 0, 0x300000, 0x600000, 0x680000, 0x690000, 0x700000, 0x800000
SPIN_CAP = 400000

SX, SW, SWO, SWS, SOUT, SDBG = 20, 24, 28, 32, 36, 40
S_WAVE, S_ID = 18, 19
V_TS = 3


class Gen:
    def __init__(self, ts=False, rot=(1, 3), mimic=True, prio=0, codepf=True):
        self.p = Prog()
        self.ts_on = ts
        self.rot = rot
        self.mimic = mimic
        self.prio = prio
        self.codepf = codepf
        self.nlab = 0

    def lab(self, s):
        self.nlab += 1
        return f'L_{s}_{self.nlab}'

    def ts(self, k):
        if self.ts_on:
            self.p(f's_memrealtime s[100:101]\ns_waitcnt lgkmcnt(0)\nv_writelane_b32 v{V_TS}, s100, {k}')

    def ts_store(self):
        if self.ts_on:
            p = self.p
            p(f's_lshl_b32 s100, s2, 2\ns_add_u32 s100, s100, s{S_WAVE}\ns_lshl_b32 s100, s100, 6\ns_add_u32 s100, s100, {WS_TS}')
            p('v_mbcnt_lo_u32_b32 v1, -1, 0\nv_mbcnt_hi_u32_b32 v1, -1, v1\nv_lshlrev_b32 v1, 2, v1')
            p('s_mov_b64 exec, 0xffff')
            p(f'buffer_store_dword v{V_TS}, v1, {sr(SWS,4)}, s100 offen')
            p('s_mov_b64 exec, -1')

    def srd(self, d, base, nbytes):
        self.p(f's_mov_b32 s{d}, s{base}\ns_and_b32 s{d+1}, s{base+1}, 0xffff\ns_mov_b32 s{d+2}, {nbytes}\ns_mov_b32 s{d+3}, 0x20000')

    def get_nonce(self, vn, vz, sn, scnt):
        p = self.p
        l0, l1 = self.lab('nonce'), self.lab('nonce_ok')
        p(f's_mov_b32 s{scnt}, 0')
        p(f'{l0}:')
        p(f'v_readfirstlane_b32 s{sn}, v{vn}')
        p(f's_cmp_lg_u32 s{sn}, 0\ns_cbranch_scc1 {l1}')
        p(f's_add_u32 s{scnt}, s{scnt}, 1\ns_cmp_gt_u32 s{scnt}, {SPIN_CAP}\ns_cbranch_scc1 {l1}')
        p('s_sleep 2')
        n0 = len(p.vm)
        p(f'buffer_load_dword v{vn}, v{vz}, {sr(SDBG,4)}, 0 offen sc1')
        p('s_waitcnt vmcnt(0)')
        del p.vm[n0:]
        p(f's_branch {l0}')
        p(f'{l1}:')

    def entry(self):
        p = self.p
        p(f'{KN}_kernel:')
        p('s_cmp_ge_u32 s2, 512\ns_cbranch_scc1 L_exit')
        p('s_load_dwordx4 s[4:7], s[0:1], 0\ns_load_dwordx4 s[8:11], s[0:1], 16\ns_load_dwordx4 s[12:15], s[0:1], 64\ns_load_dwordx2 s[16:17], s[0:1], 80')
        if self.ts_on:
            p(f'v_mov_b32 v{V_TS}, 0\ns_memrealtime s[100:101]')
        p('v_lshrrev_b32 v1, 6, v0\nv_and_b32 v0, 63, v0')
        p(f'v_readfirstlane_b32 s{S_WAVE}, v1')
        p(f's_and_b32 s{S_ID}, s2, 255')
        p('s_cmp_ge_u32 s2, 256\ns_cbranch_scc1 L_B')

    def branchA(self):
        p = self.p
        MASK0 = 44
        sQ, sRB, sK, sMW, sMX, sN, sCNT = 66, 67, 68, 70, 71, 86, 87
        sE48, sE32 = 72, 74
        t0, t1, t2, t3 = 76, 77, 78, 79
        sC0 = 80
        sP = 88
        sOW, sMO = 98, 99
        ACC = 4
        FB = [80, 116]
        WD, XD, XR, WRa, WRb = 224, 228, 231, 233, 234
        EW0, EW1, EWb = 235, 236, 237
        OD = 238
        QK, VA, VB, OS1, OS2 = 243, 244, 245, 246, 247
        WOR, WOR2, L16, ZERO, NON, FLG = 248, 249, 250, 251, 252, 253
        SGW = 254
        SGR, SGG = 152, 155
        a, b, c, d, e = 160, 161, 162, 163, 164
        XB = 61440
        EXB = 40960

        def acc(sg, t):
            return ACC + 4 * (5 * sg + t) if sg < 3 else ACC + 60 + 4 * (t - 1)

        p(f's_and_b32 s{t0}, s2, 7\ns_lshr_b32 s{t1}, s2, 3')
        p(f's_and_b32 s{t2}, s{t0}, 1\ns_lshl_b32 s{t2}, s{t2}, 2\ns_and_b32 s{t3}, s{t1}, 3\ns_add_u32 s{sQ}, s{t2}, s{t3}')
        p(f's_lshr_b32 s{t0}, s{t0}, 1\ns_lshl_b32 s{t0}, s{t0}, 3\ns_lshr_b32 s{t1}, s{t1}, 2\ns_add_u32 s{sRB}, s{t0}, s{t1}')
        p(f's_mul_i32 s{t1}, s{t1}, {self.rot[0]}\ns_mul_i32 s{t3}, s{t3}, {self.rot[1]}\ns_add_u32 s{t1}, s{t1}, s{t3}')
        p(f's_mul_i32 s{t2}, s{t1}, 26\ns_lshr_b32 s{t2}, s{t2}, 8\ns_mul_i32 s{t2}, s{t2}, 10\ns_sub_u32 s{t1}, s{t1}, s{t2}')
        p(f's_lshl_b32 s{sP}, s{t1}, 7')
        p(f's_mul_i32 s{sMW}, s{S_WAVE}, 3840\ns_mul_i32 s{sMX}, s{S_WAVE}, 2560\ns_add_u32 s{sMX}, s{sMX}, {XB}')
        p(f's_mov_b32 s{sE48}, -1\ns_mov_b32 s{sE48+1}, 0xffff\ns_mov_b32 s{sE32}, -1\ns_mov_b32 s{sE32+1}, 0')
        p(f's_mul_i32 s{t0}, s{S_WAVE}, 20\ns_lshl_b32 s{t2}, s{sRB}, 6\ns_sub_u32 s{t2}, s{t2}, 16\ns_movk_i32 s{t3}, 1280')
        p(f'v_lshrrev_b32 v{a}, 3, v0\nv_add_u32 v{a}, s{t0}, v{a}\nv_and_b32 v{b}, 7, v0')
        for i in range(3):
            if i: p(f'v_add_u32 v{a}, 8, v{a}')
            p(f'v_lshlrev_b32 v{c}, 1, v{a}')
            p(f'v_cmp_lt_u32 vcc, 7, v{a}\nv_subrev_u32 v{d}, 15, v{c}\ns_nop 0\nv_cndmask_b32 v{e}, v{c}, v{d}, vcc')
            p(f'v_cmp_lt_u32 vcc, 15, v{a}\nv_subrev_u32 v{d}, 16, v{c}\ns_nop 0\nv_cndmask_b32 v{e}, v{e}, v{d}, vcc')
            p(f'v_cmp_lt_u32 vcc, 47, v{a}\nv_subrev_u32 v{d}, 79, v{c}\ns_nop 0\nv_cndmask_b32 v{e}, v{e}, v{d}, vcc')
            p(f'v_add_u32 v{e}, s{t2}, v{e}\nv_mul_lo_u32 v{e}, v{e}, s{t3}')
            p(f'v_bfe_u32 v{c}, v{a}, 1, 3\nv_xor_b32 v{c}, v{c}, v{b}\nv_lshl_add_u32 v{XD+i}, v{c}, 4, v{e}')
        p('s_waitcnt lgkmcnt(0)')
        if self.ts_on: p(f'v_writelane_b32 v{V_TS}, s100, 0')
        self.srd(SX, 4, 2621440)
        self.srd(SWS, 16, WS_SIZE)
        self.srd(SW, 6, 2457600)
        if self.prio: p(f's_setprio {self.prio}')
        lne = self.lab('noel')
        p(f's_or_b32 s{t0}, s2, s{S_WAVE}\ns_cmp_lg_u32 s{t0}, 0\ns_cbranch_scc1 {lne}')
        p(f'v_lshrrev_b32 v{c}, 1, v0\nv_lshlrev_b32 v{c}, 7, v{c}\nv_and_b32 v{d}, 1, v0\nv_lshl_add_u32 v{c}, v{d}, 4, v{c}\nv_lshlrev_b32 v{d}, 7, v0')
        p(f's_mov_b32 s{t0}, {WS_FO}\ns_mov_b32 s{t1}, {WS_FG}')
        n0 = len(p.vm)
        p(f'buffer_load_dwordx4 v[168:171], v{c}, {sr(SWS,4)}, s{t0} offen sc1')
        p(f'buffer_load_dwordx4 v[172:175], v{d}, {sr(SWS,4)}, s{t1} offen sc1')
        del p.vm[n0:]
        p(f'{lne}:')

        def dma_x(P):
            out = []
            for i in range(3):
                s = f's_add_u32 m0, s{sMX}, {(P & 1) * 10240 + 1024 * i}\n'
                if i == 2: s += f's_mov_b64 exec, {sr(sE32,2)}\n'
                s += f'buffer_load_dwordx4 v{XD+i}, {sr(SX,4)}, s{sP+P} offen lds'
                if i == 2: s += '\ns_mov_b64 exec, -1'
                out.append((s, f'X{P}'))
            return out

        def dma_w(s_, only=None):
            out = []
            for i in range(4):
                s = ''
                if i == 0:
                    s += f's_mul_i32 s{sK}, s{sP + (s_ >> 1)}, 1920\n'
                    if s_ & 1: s += f's_add_u32 s{sK}, s{sK}, 122880\n'
                s += f's_add_u32 m0, s{sMW}, {(s_ & 3) * 15360 + 1024 * i}\n'
                if i == 3: s += f's_mov_b64 exec, {sr(sE48,2)}\n'
                s += f'buffer_load_dwordx4 v{WD+i}, {sr(SW,4)}, s{sK} offen lds'
                if i == 3: s += '\ns_mov_b64 exec, -1'
                out.append((s, f'W{s_}'))
            return out

        def wo_base(st):
            return [0, 20480, 0, 40960, 61440][st >> 2] + (st & 3) * 5120

        def dma_wo(g):
            out = []
            for i in range(5):
                s = ''
                if i == 0: s += f's_add_u32 s{sK}, s{sOW}, {g * 4 * 40960}\n'
                s += f's_add_u32 m0, s{sMO}, {wo_base(4 * g) + 1024 * i}\n'
                s += f'buffer_load_dwordx4 v{OD+i}, {sr(SWO,4)}, s{sK} offen lds'
                out.append((s, f'WO{g}'))
            return out

        for s, tg in dma_x(0): p(s, tg)
        p(f's_mul_i32 s{t0}, s{S_WAVE}, 240\ns_movk_i32 s{t1}, 2185\ns_mul_i32 s{t2}, s{sQ}, 160\ns_movk_i32 s{t3}, 3840')
        w0 = dma_w(0)
        for i in range(4):
            p(f'v_add_u32 v{a}, s{t0}, v0')
            if i: p(f'v_add_u32 v{a}, {64*i}, v{a}')
            p(f'v_mul_u32_u24 v{b}, s{t1}, v{a}\nv_lshrrev_b32 v{b}, 16, v{b}')
            p(f'v_mul_u32_u24 v{c}, 30, v{b}\nv_sub_u32 v{c}, v{a}, v{c}')
            p(f'v_mul_u32_u24 v{d}, 26, v{c}\nv_lshrrev_b32 v{d}, 8, v{d}')
            p(f'v_mul_u32_u24 v{d}, 1120, v{d}\nv_lshl_add_u32 v{d}, v{c}, 4, v{d}\nv_add_u32 v{d}, s{t2}, v{d}')
            p(f'v_and_b32 v{c}, 12, v{b}\nv_lshlrev_b32 v{c}, 1, v{c}\nv_bfe_u32 v{e}, v{b}, 4, 1\nv_lshl_add_u32 v{c}, v{e}, 2, v{c}')
            p(f'v_and_b32 v{b}, 3, v{b}\nv_add_u32 v{c}, v{c}, v{b}\nv_mad_u32_u24 v{WD+i}, v{c}, s{t3}, v{d}')
            p(*w0[i])
        for s, tg in dma_w(1): p(s, tg)
        for P in range(1, 10):
            p(f's_add_u32 s{sP+P}, s{sP+P-1}, 128\ns_cmp_ge_u32 s{sP+P}, 1280\ns_cselect_b32 s{t0}, 1280, 0\ns_sub_u32 s{sP+P}, s{sP+P}, s{t0}')
        for s, tg in dma_x(1) + dma_w(2) + dma_w(3): p(s, tg)

        self.srd(SWO, 8, 819200)
        self.srd(SOUT, 12, 5242880)
        self.srd(SDBG, 14, 256)
        n, g = 165, 166
        p(f'v_and_b32 v{n}, 15, v0\nv_lshrrev_b32 v{g}, 4, v0\nv_mov_b32 v{ZERO}, 0\nv_lshlrev_b32 v{L16}, 4, v0')
        p(f'v_lshrrev_b32 v{a}, 1, v{n}\nv_xor_b32 v{a}, v{a}, v{g}\nv_lshlrev_b32 v{a}, 4, v{a}\nv_lshl_add_u32 v{a}, v{n}, 7, v{a}')
        p(f'v_add_u32 v{XR}, {XB}, v{a}\nv_xor_b32 v{XR+1}, 64, v{XR}')
        p(f'v_lshrrev_b32 v{a}, 2, v0\nv_and_b32 v{b}, 3, v0\nv_lshlrev_b32 v{b}, 3, v{b}')
        p(f'v_mul_u32_u24 v{c}, 480, v{a}\nv_add_u32 v{c}, v{c}, v{b}')
        p(f's_mul_i32 s{t0}, s{S_WAVE}, 96\ns_add_u32 s{t0}, s{t0}, 96\ns_min_u32 s{t1}, s{S_WAVE}, 2\ns_lshl_b32 s{t1}, s{t1}, 5')
        p(f'v_add_u32 v{WRa}, s{t0}, v{c}\nv_add_u32 v{WRb}, s{t1}, v{c}')
        p(f'v_mul_u32_u24 v{c}, 160, v{a}\nv_add_u32 v{WOR}, v{c}, v{b}\nv_add_u32 v{WOR2}, 40960, v{WOR}')
        p(f'v_lshlrev_b32 v{a}, 3, v{g}\nv_add_u32 v{a}, {EXB}, v{a}')
        p(f'v_mul_u32_u24 v{b}, 488, v{n}\nv_add_u32 v{b}, v{b}, v{a}\nv_add_u32 v{c}, {8*488}, v{b}')
        p(f'v_add_u32 v{EW1}, s{t0}, v{c}\nv_add_u32 v{EWb}, s{t1}, v{c}')
        p(f'v_bfe_u32 v{c}, v0, 3, 1\nv_mul_u32_u24 v{c}, {32*488}, v{c}\nv_add_u32 v{b}, v{b}, v{c}\nv_add_u32 v{EW0}, s{t0}, v{b}')
        p(f's_and_b32 s{t0}, s{S_WAVE}, 1\ns_lshr_b32 s{t1}, s{S_WAVE}, 1')
        p(f's_mul_i32 s{t2}, s{t0}, {40*488}\ns_mul_i32 s{t3}, s{t1}, 80\ns_add_u32 s{t2}, s{t2}, s{t3}\ns_add_u32 s{t2}, s{t2}, {EXB}')
        hh = 167
        p(f'v_lshrrev_b32 v{hh}, 5, v0\nv_mul_u32_u24 v{a}, 40, v{hh}\nv_add_u32 v{a}, s{t2}, v{a}')
        p(f'v_and_b32 v{b}, 31, v0\nv_mul_u32_u24 v{b}, 488, v{b}\nv_add_u32 v{QK}, v{a}, v{b}')
        p(f'v_and_b32 v{b}, 16, v0\nv_and_b32 v{c}, 3, v0\nv_lshl_add_u32 v{b}, v{c}, 2, v{b}\nv_bfe_u32 v{c}, v0, 2, 2\nv_add_u32 v{b}, v{b}, v{c}')
        p(f'v_mul_u32_u24 v{b}, 488, v{b}\nv_add_u32 v{a}, v{a}, v{b}\nv_add_u32 v{a}, 320, v{a}')
        p(f'v_lshl_add_u32 v{VA}, v{hh}, 3, v{a}\nv_xor_b32 v{c}, 1, v{hh}\nv_lshl_add_u32 v{VB}, v{c}, 5, v{a}')
        p(f's_lshl_b32 s{t2}, s{sRB}, 2\ns_lshl_b32 s{t0}, s{t0}, 1\ns_add_u32 s{t2}, s{t2}, s{t0}\ns_mul_i32 s{t2}, s{t2}, 20480')
        p(f's_mul_i32 s{t3}, s{sQ}, 2560\ns_add_u32 s{t2}, s{t2}, s{t3}\ns_mul_i32 s{t1}, s{t1}, 1280\ns_add_u32 s{t2}, s{t2}, s{t1}')
        p(f'v_and_b32 v{a}, 1, v{g}\nv_mul_u32_u24 v{a}, 20480, v{a}\nv_lshl_add_u32 v{a}, v{n}, 4, v{a}\nv_add_u32 v{a}, s{t2}, v{a}')
        p(f'v_mul_u32_u24 v{b}, 768, v{hh}\nv_add_u32 v{OS1}, v{a}, v{b}\nv_add_u32 v{a}, 512, v{a}\nv_lshl_or_b32 v{OS2}, v{hh}, 30, v{a}')
        p(f's_cmp_eq_u32 s{sRB}, 0\ns_cselect_b32 s{t0}, 8, 0')
        p(f'v_and_b32 v{a}, 3, v0\nv_add_u32 v{b}, 1, v{a}\nv_and_b32 v{c}, 28, v0\nv_sub_u32 v{c}, s{t0}, v{c}\nv_max_i32 v{b}, v{b}, v{c}')
        p(f'v_add_u32 v{a}, 8, v{a}\nv_sub_u32 v{a}, v{a}, v{b}')
        for m in range(1, 12):
            p(f'v_sub_u32 v{c}, {m}, v{b}\nv_cmp_le_u32 {sr(MASK0 + 2*(m-1), 2)}, v{c}, v{a}')
        p(f's_movk_i32 s{t1}, 6554\ns_mul_i32 s{t2}, s{sQ}, 160\ns_movk_i32 s{t3}, 1280')
        p(f's_mul_i32 s{sOW}, s{S_WAVE}, 40960\ns_mul_i32 s{sMO}, s{S_WAVE}, 5120')
        for i in range(5):
            p(f'v_add_u32 v{a}, {64*i}, v0\nv_mul_u32_u24 v{b}, s{t1}, v{a}\nv_lshrrev_b32 v{b}, 16, v{b}')
            p(f'v_mul_u32_u24 v{c}, 10, v{b}\nv_sub_u32 v{d}, v{a}, v{c}\nv_lshlrev_b32 v{d}, 4, v{d}\nv_add_u32 v{d}, s{t2}, v{d}')
            p(f'v_and_b32 v{c}, 12, v{b}\nv_lshlrev_b32 v{c}, 1, v{c}\nv_bfe_u32 v{e}, v{b}, 4, 1\nv_lshl_add_u32 v{c}, v{e}, 2, v{c}')
            p(f'v_and_b32 v{b}, 3, v{b}\nv_add_u32 v{c}, v{c}, v{b}\nv_mad_u32_u24 v{OD+i}, v{c}, s{t3}, v{d}')
        p(f's_lshl_b32 s{t0}, s{S_WAVE}, 12\ns_add_u32 s{t0}, s{t0}, 20480')
        p(f'v_mul_u32_u24 v{a}, 176, v{n}\nv_lshl_add_u32 v{a}, v{g}, 3, v{a}\nv_add_u32 v{SGW}, s{t0}, v{a}')
        p(f'v_and_b32 v{a}, 7, v0\nv_lshlrev_b32 v{FLG}, 2, v{a}')
        sc = f2u(20 ** -0.5); l2e = f2u(math.log2(math.e))
        p(f's_mov_b32 s{sC0}, {sc}\ns_mov_b32 s{sC0+1}, {sc}\ns_mov_b32 s{sC0+2}, {l2e}\ns_mov_b32 s{sC0+3}, {l2e}\ns_mov_b32 s{sC0+4}, 0xffff0000\ns_mov_b32 s{sC0+5}, 0xff800000')

        def reads(s_):
            fb = FB[s_ & 1]; out = []
            xb = ((s_ >> 1) & 1) * 10240; wb = (s_ & 3) * 15360
            for sg in range(4):
                for hi in range(2):
                    ad, off = (WRa, 32 * sg) if sg < 3 else (WRb, 0)
                    out.append((f'ds_read_b64_tr_b16 {vr(fb + 20 + 4*sg + 2*hi, 2)}, v{ad} offset:{wb + hi * 7680 + off}', f'R{s_}'))
            for t in range(5):
                out.insert(2 + 2 * t if t < 4 else len(out), (f'ds_read_b128 {vr(fb + 4*t, 4)}, v{XR + (s_ & 1)} offset:{xb + t * 2048}', f'R{s_}'))
            return out

        tiles = [(sg, t) for t in range(5) for sg in range(4) if not (sg == 3 and t == 0)]

        def mfma(s_, sg, t):
            fb = FB[s_ & 1]; ac = vr(acc(sg, t), 4)
            return f'v_mfma_f32_16x16x32_bf16 {ac}, {vr(fb + 20 + 4*sg, 4)}, {vr(fb + 4*t, 4)}, {ac if s_ else 0}'

        self.ts(1)
        p.wait(vm=['X0', 'W0'])
        p('s_barrier')
        for s, tg in reads(0): p(s, tg)
        lne = self.lab('noel2'); ll = self.lab('el')
        p(f's_or_b32 s{t0}, s2, s{S_WAVE}\ns_cmp_lg_u32 s{t0}, 0\ns_cbranch_scc1 {lne}')
        p(f's_mov_b32 s{t0}, 0\n{ll}:\ns_add_u32 s{t0}, s{t0}, 1\ns_mov_b64 s[{t2}:{t3}], 0')
        for r in range(168, 176):
            p(f'v_cmp_eq_u32 vcc, s{t0}, v{r}\ns_or_b64 s[{t2}:{t3}], s[{t2}:{t3}], vcc')
        p(f's_cmp_lg_u64 s[{t2}:{t3}], 0\ns_cbranch_scc1 {ll}')
        p(f'v_mov_b32 v168, s{t0}\ns_mov_b64 exec, 1')
        n0 = len(p.vm)
        p(f'buffer_store_dword v168, v{ZERO}, {sr(SDBG,4)}, 0 offen sc1')
        del p.vm[n0:]
        p(f's_mov_b64 exec, -1\n{lne}:')
        p.wait(vm=['W1'], lg='all')
        self.ts(2)
        p('s_barrier')

        CV = FB[0]
        for s_ in range(20):
            fill = []
            dm = []
            if s_ & 1 and (s_ + 3) // 2 <= 9: dm += dma_x((s_ + 3) // 2)
            if s_ + 4 <= 19: dm += dma_w(s_ + 4)
            if s_ == 17: dm += dma_wo(0)
            if s_ == 18: dm += dma_wo(1)
            rd = reads(s_ + 1) if s_ < 19 else []
            slots = [[] for _ in range(19)]
            for i, x in enumerate(rd): slots[i].append(x)
            for i, x in enumerate(dm): slots[min(18, 1 + (i * 17) // max(1, len(dm)))].append(x)
            for i, (sg, t) in enumerate(tiles):
                p(mfma(s_, sg, t))
                for x in slots[i]: p(*x)
                if s_ == 19 and i >= 3:
                    self.exw(tiles[i - 3], acc, CV, i - 3, EW0, EW1, EWb)
            if s_ < 19:
                w = []
                if s_ + 2 <= 19:
                    w.append(f'W{s_+2}')
                    if s_ % 2 == 0: w.append(f'X{(s_+2)//2}')
                p.wait(vm=w or None, lg='all')
                if s_ in (3, 9, 15, 18): self.ts({3: 3, 9: 4, 15: 5, 18: 6}[s_])
                p('s_barrier')
        for i in range(16, 19): self.exw(tiles[i], acc, CV, i, EW0, EW1, EWb)
        p(f'buffer_load_dword v{NON}, v{ZERO}, {sr(SDBG,4)}, 0 offen sc1', 'NON')
        p.wait(lg='all')
        p('s_barrier')
        self.ts(7)

        Q, K, V, S, T, O, PP = 4, 16, 48, 80, 92, 104, 124
        for cc in range(5): p(f'ds_read_b64 {vr(Q + 2*cc, 2)}, v{QK} offset:{8*488 + 8*cc}', 'Q')
        for cc in range(5):
            for kb in range(3): p(f'ds_read_b64 {vr(K + 10*kb + 2*cc, 2)}, v{QK} offset:{4*kb*488 + 160 + 8*cc}', f'K{cc}')
        vrd = []
        for t in range(5):
            for kb in range(3):
                ad, off = (VA, 8 * t) if t < 4 else (VB, 0)
                vrd.append(f'ds_read_b64_tr_b16 {vr(V + 6*t + 2*kb, 2)}, v{ad} offset:{4*kb*488 + off}')
        for cc in range(5):
            p.wait(lg=f'K{cc}')
            for kb in range(3):
                s4 = vr(S + 4 * kb, 4)
                p(f'v_mfma_f32_4x4x4_16b_bf16 {s4}, {vr(K + 10*kb + 2*cc, 2)}, {vr(Q + 2*cc, 2)}, {s4 if cc else 0}')
            for x in vrd[3 * cc:3 * cc + 3]: p(x, 'V')
        cS, cL, cM, cI = sr(sC0, 2), sr(sC0 + 2, 2), f's{sC0+4}', f's{sC0+5}'

        def round16(src, dst):
            for i in range(6): p(f'v_cvt_pk_bf16_f32 v{T+i}, v{src+2*i}, v{src+2*i+1}')
            for i in range(6): p(f'v_lshlrev_b32 v{dst+2*i}, 16, v{T+i}\nv_and_b32 v{dst+2*i+1}, {cM}, v{T+i}')
        if self.mimic: round16(S, S)
        for i in range(6): p(f'v_pk_mul_f32 {vr(S+2*i,2)}, {vr(S+2*i,2)}, {cS}')
        if self.mimic: round16(S, S)
        p(f'v_mov_b32 v{T}, {cI}\nv_mov_b32 v{S}, {cI}')
        for m in range(1, 12): p(f'v_cndmask_b32 v{S+m}, v{T}, v{S+m}, {sr(MASK0 + 2*(m-1), 2)}')
        p(f'v_max3_f32 v{T}, v{S+1}, v{S+2}, v{S+3}\nv_max3_f32 v{T+1}, v{S+4}, v{S+5}, v{S+6}\nv_max3_f32 v{T+2}, v{S+7}, v{S+8}, v{S+9}')
        p(f'v_max3_f32 v{T}, v{T}, v{S+10}, v{S+11}\nv_max3_f32 v{T}, v{T}, v{T+1}, v{T+2}')
        p(f'v_mov_b32 v{T+1}, v{T}')
        for i in range(6): p(f'v_pk_add_f32 {vr(S+2*i,2)}, {vr(S+2*i,2)}, {vr(T,2)} neg_lo:[0,1] neg_hi:[0,1]')
        for i in range(6): p(f'v_pk_mul_f32 {vr(S+2*i,2)}, {vr(S+2*i,2)}, {cL}')
        for m in range(12): p(f'v_exp_f32 v{S+m}, v{S+m}')
        p(f'v_pk_add_f32 {vr(T,2)}, {vr(S,2)}, {vr(S+2,2)}\nv_pk_add_f32 {vr(T+2,2)}, {vr(S+4,2)}, {vr(S+6,2)}\nv_pk_add_f32 {vr(T+4,2)}, {vr(S+8,2)}, {vr(S+10,2)}')
        p(f'v_pk_add_f32 {vr(T,2)}, {vr(T,2)}, {vr(T+2,2)}\nv_pk_add_f32 {vr(T,2)}, {vr(T,2)}, {vr(T+4,2)}')
        p(f'v_add_f32 v{T}, v{T}, v{T+1}\nv_rcp_f32 v{T}, v{T}\ns_nop 0\nv_mov_b32 v{T+1}, v{T}')
        for i in range(6): p(f'v_pk_mul_f32 {vr(S+2*i,2)}, {vr(S+2*i,2)}, {vr(T,2)}')
        for i in range(6): p(f'v_cvt_pk_bf16_f32 v{PP+i}, v{S+2*i}, v{S+2*i+1}')
        p.wait(lg='V')
        for kb in range(3):
            for t in range(5):
                o4 = vr(O + 4 * t, 4)
                p(f'v_mfma_f32_4x4x4_16b_bf16 {o4}, {vr(V + 6*t + 2*kb, 2)}, {vr(PP + 2*kb, 2)}, {o4 if kb else 0}')
        OC = 132
        for t in (4, 0, 1, 2, 3):
            dst = OC + 2 * t
            p(f'v_cvt_pk_bf16_f32 v{dst}, v{O+4*t}, v{O+4*t+1}\nv_cvt_pk_bf16_f32 v{dst+1}, v{O+4*t+2}, v{O+4*t+3}')
        p(f'v_permlane32_swap_b32 v{OC+8}, v{OC+10}\nv_permlane32_swap_b32 v{OC+9}, v{OC+11}')
        p(f'buffer_store_dwordx4 {vr(OC,4)}, v{OS1}, {sr(SWS,4)}, 0 offen sc1', 'OST')
        p(f'buffer_store_dwordx4 {vr(OC+4,4)}, v{OS1}, {sr(SWS,4)}, 0 offen offset:256 sc1', 'OST')
        p(f'buffer_store_dwordx4 {vr(OC+8,4)}, v{OS2}, {sr(SWS,4)}, 0 offen sc1', 'OST')
        p.wait(vm=['WO1', 'NON'])
        self.ts(8)
        p('s_barrier')
        OF, WR, DB, AC2 = 4, 144, 84, 124
        dm = dma_wo(3) + dma_wo(4)

        def wo_reads(st, dst):
            out = []
            base = wo_base(st); ad = WOR
            if base >= 40960: base -= 40960; ad = WOR2
            for tl in range(5):
                for hi in range(2):
                    out.append((f'ds_read_b64_tr_b16 {vr(dst + 4*tl + 2*hi, 2)}, v{ad} offset:{base + hi * 2560 + tl * 32}', f'WOR{st}'))
            return out
        rr = []
        for st in range(4): rr += wo_reads(st, WR + 20 * st)
        for i, x in enumerate(dm):
            p(*x)
            for y in rr[4 * i:4 * i + 4]: p(*y)
        self.get_nonce(NON, ZERO, sN, sCNT)
        p(f'v_mov_b32 v{NON}, s{sN}')
        p(f's_lshl_b32 s{t0}, s{sRB}, 7\ns_add_u32 s{t0}, s{t0}, {WS_FO}\ns_lshl_b32 s{t1}, s{sQ}, 2\ns_add_u32 s{t1}, s{t1}, s{t0}')
        p.wait(vm='OST', lg='all')
        self.ts(9)
        p('s_barrier')
        lsk = self.lab('noflag')
        p(f's_cmp_lg_u32 s{S_WAVE}, 0\ns_cbranch_scc1 {lsk}\ns_mov_b64 exec, 1')
        n0 = len(p.vm)
        p(f'buffer_store_dword v{NON}, v{ZERO}, {sr(SWS,4)}, s{t1} offen sc1')
        del p.vm[n0:]
        p(f's_mov_b64 exec, -1\n{lsk}:')
        for x in dma_wo(2): p(*x)
        for x in wo_reads(4, DB): p(*x)
        p(f's_lshl_b32 s{t2}, s{sRB}, 2\ns_add_u32 s{t2}, s{t2}, s{S_WAVE}\ns_mul_i32 s{t2}, s{t2}, 20480')
        l0, l1 = self.lab('pollo'), self.lab('pollo_ok')
        p(f's_mov_b32 s{sCNT}, 0\n{l0}:')
        p(f'buffer_load_dword v1, v{FLG}, {sr(SWS,4)}, s{t0} offen sc1', 'POLL')
        p('s_waitcnt vmcnt(0)')
        p(f'v_cmp_ne_u32 vcc, v1, v{NON}\ns_add_u32 s{sCNT}, s{sCNT}, 1\ns_cbranch_vccz {l1}')
        p(f's_cmp_gt_u32 s{sCNT}, {SPIN_CAP}\ns_cbranch_scc1 {l1}\ns_sleep 1\ns_branch {l0}\n{l1}:')
        for j in range(20):
            if j and j % 4 == 0: p(f's_add_u32 s{t2}, s{t2}, 4096')
            p(f'buffer_load_dwordx4 {vr(OF + 4*j, 4)}, v{L16}, {sr(SWS,4)}, s{t2} offen offset:{1024 * (j % 4)} sc1', f'O{j}')
        self.ts(10)
        SGR, SGG = 224, 228
        p(f's_lshl_b32 s{t0}, s{sRB}, 6\ns_and_b32 s{t1}, s{S_WAVE}, 1\ns_lshl_b32 s{t1}, s{t1}, 5\ns_add_u32 s{t0}, s{t0}, s{t1}')
        p(f's_lshr_b32 s{t1}, s{S_WAVE}, 1\ns_add_u32 s{t0}, s{t0}, s{t1}\ns_mul_i32 s{t0}, s{t0}, 2560\ns_mul_i32 s{t1}, s{sQ}, 160\ns_add_u32 s{t0}, s{t0}, s{t1}')
        p(f's_lshl_b32 s{t1}, s{S_WAVE}, 12\ns_add_u32 s{t1}, s{t1}, 20480\ns_movk_i32 s{t3}, 6554')
        ta, tb, tc = 231, 232, 233
        for i in range(3):
            p(f'v_add_u32 v{ta}, {64*i}, v0\nv_mul_u32_u24 v{tb}, s{t3}, v{ta}\nv_lshrrev_b32 v{tb}, 16, v{tb}')
            p(f'v_mul_u32_u24 v{tc}, 10, v{tb}\nv_sub_u32 v{ta}, v{ta}, v{tc}\nv_lshlrev_b32 v{ta}, 4, v{ta}')
            p(f'v_mul_u32_u24 v{tc}, 176, v{tb}\nv_add3_u32 v{SGR+i}, v{tc}, v{ta}, s{t1}')
            p(f'v_mul_u32_u24 v{tc}, 5120, v{tb}\nv_add3_u32 v{SGG+i}, v{tc}, v{ta}, s{t0}')
        p(f'v_lshrrev_b32 v{ta}, 5, v0\nv_lshl_or_b32 v{SGG+2}, v{ta}, 30, v{SGG+2}')
        for j in range(20):
            src = WR + 20 * j if j < 4 else DB + 20 * (j & 1)
            p.wait(vm=f'O{j}', lg=f'WOR{j}' if j >= 4 else None)
            if j == 7: p('s_barrier')
            nx = wo_reads(j + 1, DB + 20 * ((j + 1) & 1)) if 4 <= j < 19 else []
            for tl in range(5):
                ac = vr(AC2 + 4 * tl, 4)
                p(f'v_mfma_f32_16x16x32_bf16 {ac}, {vr(src + 4*tl, 4)}, {vr(OF + 4*j, 4)}, {ac if j else 0}')
                for x in nx[2 * tl:2 * tl + 2]: p(*x)
        self.ts(11)
        for tl in range(5):
            p(f'v_cvt_pk_bf16_f32 v{4+2*tl}, v{AC2+4*tl}, v{AC2+4*tl+1}\nv_cvt_pk_bf16_f32 v{5+2*tl}, v{AC2+4*tl+2}, v{AC2+4*tl+3}')
            p(f'ds_write_b64 v{SGW}, {vr(4+2*tl, 2)} offset:{32*tl}')
        p.wait(lg='all')
        for i in range(3): p(f'ds_read_b128 {vr(16+4*i, 4)}, v{SGR+i}', f'SG{i}')
        for i in range(3):
            p.wait(lg=f'SG{i}')
            p(f'buffer_store_dwordx4 {vr(16+4*i, 4)}, v{SGG+i}, {sr(SOUT,4)}, 0 offen')
        if self.ts_on:
            p('s_waitcnt vmcnt(0)')
            self.ts(12)
        self.ts_store()
        p('s_endpgm')

    def exw(self, tile, acc, CV, i, EW0, EW1, EWb):
        sg, t = tile
        r = CV + 2 * i if i < 18 else 158
        ac = acc(sg, t)
        self.p(f'v_cvt_pk_bf16_f32 v{r}, v{ac}, v{ac+1}\nv_cvt_pk_bf16_f32 v{r+1}, v{ac+2}, v{ac+3}')
        rowoff = [0, 0, 16, 40, 56][t] * 488
        if sg == 3: ad, off = EWb, rowoff
        elif t == 0: ad, off = EW0, 32 * sg
        else: ad, off = EW1, rowoff + 32 * sg
        self.p(f'ds_write_b64 v{ad}, {vr(r, 2)} offset:{off}')

    def branchB(self):
        p = self.p
        p.vm = []; p.lg = []
        sCLS, sS2, sTYP, sPAR, sN, sCNT = 44, 45, 46, 47, 48, 49
        sSEL = 50
        t0, t1, t2, t3 = 56, 57, 58, 59
        sE32 = 60
        sKAP, sDU = 62, 63
        a, b, c, d, e = 240, 241, 242, 243, 244
        n, g, ZERO, NON, L16 = 245, 246, 247, 248, 249
        FBUF, STG = 40960, 53248
        p('L_B:')
        p(f's_and_b32 s{t0}, s2, 7\ns_lshr_b32 s{t1}, s{S_ID}, 3\ns_and_b32 s{sCLS}, s{t1}, 3\ns_lshr_b32 s{t1}, s{t1}, 2')
        p(f's_lshl_b32 s{t0}, s{t0}, 3\ns_add_u32 s{sS2}, s{t0}, s{t1}\ns_lshr_b32 s{sTYP}, s{sCLS}, 1\ns_and_b32 s{sPAR}, s{sCLS}, 1')
        p(f'v_and_b32 v{n}, 15, v0\nv_lshrrev_b32 v{g}, 4, v0\nv_mov_b32 v{ZERO}, 0\nv_lshlrev_b32 v{L16}, 4, v0')
        XD = 250
        p(f's_lshl_b32 s{t0}, s{S_WAVE}, 2\ns_mov_b32 s{t1}, 81920')
        p(f'v_add_u32 v{a}, s{t0}, v{g}\nv_xor_b32 v{a}, v{a}, v{n}\nv_lshlrev_b32 v{a}, 4, v{a}\nv_mad_u32_u24 v{XD}, v{g}, s{t1}, v{a}')
        p(f's_lshl_b32 s{t0}, s{S_WAVE}, 8\ns_add_u32 s{t0}, s{t0}, s{sS2}\ns_mul_i32 s{t0}, s{t0}, 1280\ns_lshl_b32 s{t1}, s{S_WAVE}, 10')
        p('s_waitcnt lgkmcnt(0)')
        if self.ts_on: p(f'v_writelane_b32 v{V_TS}, s100, 0')
        self.srd(SX, 10, 2621440)
        for q in range(2):
            for bc in range(5):
                p(f's_add_u32 m0, s{t1}, {bc * 8192 + q * 4096}\ns_add_u32 s{t2}, s{t0}, {q * 1024 * 1280 + bc * 256}')
                p(f'buffer_load_dwordx4 v{XD}, {sr(SX,4)}, s{t2} offen lds', 'X')
        if self.codepf:
            lsk = self.lab('nopf')
            p(f's_cmp_lg_u32 s{S_WAVE}, 3\ns_cbranch_scc1 {lsk}')
            p(f's_getpc_b64 s[{t2}:{t3}]\nL_pc:')
            p(f's_lshr_b32 s{t0}, s{S_ID}, 3\ns_lshl_b32 s{t0}, s{t0}, 10\ns_sub_u32 s{t0}, s{t0}, L_pc-{KN}_kernel')
            p(f'v_and_b32 v{a}, 7, v0\nv_lshlrev_b32 v{a}, 7, v{a}\nv_add_u32 v{a}, s{t0}, v{a}\nv_min_i32 v{a}, L_exit-L_pc, v{a}')
            p(f'v_ashrrev_i32 v{b}, 31, v{a}\nv_mov_b32 v{c}, s{t3}\nv_add_co_u32 v{a}, vcc, s{t2}, v{a}\nv_addc_co_u32 v{b}, vcc, v{b}, v{c}, vcc')
            n0 = len(p.vm)
            p(f'global_load_dword v255, v[{a}:{b}], off')
            del p.vm[n0:]
            p(f'{lsk}:')
        self.srd(SWS, 16, WS_SIZE)
        self.srd(SOUT, 12, 5242880)
        self.srd(SDBG, 14, 256)
        p(f's_mov_b32 s{sE32}, -1\ns_mov_b32 s{sE32+1}, 0')
        p(f's_xor_b32 s{t2}, s{sPAR}, s{sTYP}')
        for i, s in enumerate((sPAR, sTYP, t2)):
            p(f's_lshl_b32 s{t0}, s{s}, 15\ns_or_b32 s{sSEL+2*i}, s{t0}, 0x3f80\ns_lshl_b32 s{sSEL+2*i+1}, s{sSEL+2*i}, 16')
        FA = 200
        p(f's_and_b32 s{t0}, s{S_WAVE}, 1\ns_lshl_b32 s{t0}, s{t0}, 12\ns_and_b32 s{t1}, s{S_WAVE}, 2')
        p(f'v_lshlrev_b32 v{d}, 8, v{n}\nv_add_u32 v{d}, s{t0}, v{d}')
        p(f'v_mul_u32_u24 v{e}, 5, v{g}\nv_add_u32 v{e}, s{t1}, v{e}')

        def chaddr(dst, sign, const):
            p(f'v_add_u32 v{a}, {const}, v{e}' if sign > 0 else f'v_sub_u32 v{a}, {const}, v{e}')
            p(f'v_min_u32 v{a}, 79, v{a}')
            p(f'v_xor_b32 v{b}, v{a}, v{n}\nv_and_b32 v{b}, 15, v{b}\nv_lshl_add_u32 v{b}, v{b}, 4, v{d}\nv_lshrrev_b32 v{a}, 4, v{a}\nv_lshl_add_u32 v{dst}, v{a}, 13, v{b}')
        for i in range(3):
            chaddr(FA + 4 * i, 1, i); chaddr(FA + 4 * i + 1, 1, 40 + i)
            chaddr(FA + 4 * i + 2, -1, 79 - i); chaddr(FA + 4 * i + 3, -1, 39 - i)
        chaddr(FA + 12, -1, 80); chaddr(FA + 13, -1, 40)
        ZA = 214
        p(f'v_xor_b32 v{a}, 4, v{n}\nv_lshlrev_b32 v{a}, 4, v{a}\nv_lshl_add_u32 v{ZA}, v{n}, 8, v{a}')
        p(f'v_xor_b32 v{a}, 12, v{n}\nv_lshlrev_b32 v{a}, 4, v{a}\nv_lshl_add_u32 v{ZA+1}, v{n}, 8, v{a}')
        FW = 216
        p(f's_and_b32 s{t0}, s{S_WAVE}, 1\ns_mul_i32 s{t0}, s{t0}, 5120\ns_lshl_b32 s{t1}, s{t1}, 10\ns_add_u32 s{t0}, s{t0}, s{t1}\ns_add_u32 s{t0}, s{t0}, {FBUF}')
        p(f'v_add_u32 v{FW}, s{t0}, v{L16}')
        MX = 4
        p(f's_lshl_b32 s{t0}, s{S_WAVE}, 5\ns_add_u32 s{t0}, s{t0}, s{sPAR}\ns_mul_i32 s{t1}, s{sTYP}, {fh(0.25)}')
        p(f'v_lshl_add_u32 v{a}, v{n}, 1, s{t0}\nv_cvt_f32_u32 v{e}, v{g}\nv_mul_f32 v{e}, {fh(40.0)}, v{e}')
        TT = 220
        for tl in range(3):
            base = MX + 22 * tl
            p(f'v_add_u32 v{b}, {128*tl}, v{a}\nv_cvt_f32_u32 v{b}, v{b}\nv_mul_f32 v{c}, {fh(1/640)}, v{b}\nv_fma_f32 v{d}, v{c}, v{e}, s{t1}')
            p(f'v_mul_f32 v{b}, {fh(0.25)}, v{b}\nv_add_f32 v{b}, s{t1}, v{b}\nv_cos_f32 v{b}, v{b}\nv_mov_b32 v{base+1}, 0\nv_cvt_pk_bf16_f32 v{base}, v{b}, 0')
            for k0 in range(0, 40, 8):
                for i in range(8):
                    p(f'v_fmamk_f32 v{TT+i}, v{c}, {fh(float(k0+i))}, v{d}')
                for i in range(8): p(f'v_cos_f32 v{TT+i}, v{TT+i}')
                for i in range(4): p(f'v_cvt_pk_bf16_f32 v{base + 2 + k0//2 + i}, v{TT+2*i}, v{TT+2*i+1}')
        AL = 72
        p(f's_cmp_eq_u32 s{sTYP}, 0\ns_cselect_b32 s{t0}, 0, {fh(0.25)}\ns_cselect_b32 s{t1}, {fh(-0.25)}, 0')
        p(f'v_cvt_f32_u32 v{e}, v{g}\nv_mul_f32 v{e}, 4.0, v{e}')
        for rt in range(2):
            p(f'v_lshrrev_b32 v{a}, 1, v{n}\nv_add_u32 v{a}, {8*rt}, v{a}\nv_and_b32 v{b}, 1, v{n}\nv_mov_b32 v{c}, s{t0}\nv_mov_b32 v{d}, s{t1}')
            p(f'v_cmp_eq_u32 vcc, 1, v{b}\ns_nop 1\nv_cndmask_b32 v{c}, v{c}, v{d}, vcc')
            if rt == 0:
                p(f'v_lshlrev_b32 v{b}, 4, v{b}\nv_cmp_eq_u32 vcc, 0, v{a}\ns_nop 1\nv_cndmask_b32 v{a}, v{a}, v{b}, vcc\nv_cndmask_b32 v{c}, v{c}, v{ZERO}, vcc')
            p(f'v_cvt_f32_u32 v{a}, v{a}\nv_mul_f32 v{a}, {fh(1/32)}, v{a}\nv_fma_f32 v{d}, v{a}, v{e}, v{c}')
            for i in range(8): p(f'v_fmamk_f32 v{TT+i}, v{a}, {fh(float(i if i < 4 else 12 + i))}, v{d}')
            for i in range(8): p(f'v_cos_f32 v{TT+i}, v{TT+i}')
            for i in range(4): p(f'v_cvt_pk_bf16_f32 v{AL + 4*rt + i}, v{TT+2*i}, v{TT+2*i+1}')
        SW_, SR_, SG_, XR_, XG_ = 217, 218, 219, 228, 229
        p(f's_lshl_b32 s{t0}, s{S_WAVE}, 5\ns_add_u32 s{t0}, s{t0}, {STG}')
        p(f'v_mul_u32_u24 v{a}, 400, v{n}\nv_lshl_add_u32 v{a}, v{g}, 3, v{a}\nv_add_u32 v{SW_}, s{t0}, v{a}')
        p(f's_lshl_b32 s{t0}, s{S_WAVE}, 3\nv_lshrrev_b32 v{a}, 3, v0\nv_add_u32 v{a}, s{t0}, v{a}\nv_and_b32 v{b}, 7, v0')
        p(f'v_mul_u32_u24 v{c}, 400, v{a}\nv_add_u32 v{c}, {STG}, v{c}\nv_lshl_add_u32 v{SR_}, v{b}, 4, v{c}')
        p(f'v_lshl_add_u32 v{c}, v{b}, 6, v{c}\nv_add_u32 v{XR_}, 64, v{c}')
        p(f'v_lshrrev_b32 v{c}, 1, v{a}\nv_mul_u32_u24 v{c}, 5, v{c}\nv_and_b32 v{a}, 1, v{a}\nv_lshlrev_b32 v{a}, 6, v{a}\nv_add_u32 v{a}, s{sS2}, v{a}')
        p(f'v_lshrrev_b32 v{d}, 2, v{b}\nv_add_u32 v{d}, v{d}, v{c}\nv_lshlrev_b32 v{d}, 15, v{d}\nv_lshl_add_u32 v{d}, v{a}, 8, v{d}')
        p(f's_lshl_b32 s{t0}, s{sCLS}, 6\ns_add_u32 s{t0}, s{t0}, {WS_G}\nv_and_b32 v{e}, 3, v{b}\nv_lshl_add_u32 v{d}, v{e}, 4, v{d}\nv_add_u32 v{SG_}, s{t0}, v{d}')
        SG2 = 230
        p(f'v_bfe_u32 v{e}, v0, 2, 1\nv_lshl_or_b32 v{SG2}, v{e}, 30, v{SG_}')
        p(f'v_add_u32 v{d}, v{b}, v{c}\nv_lshlrev_b32 v{d}, 11, v{d}\nv_lshl_add_u32 v{d}, v{a}, 4, v{d}')
        p(f's_lshl_b32 s{t0}, s{sTYP}, 3\ns_add_u32 s{t0}, s{t0}, {WS_EX}\nv_add_u32 v{d}, s{t0}, v{d}')
        p(f'v_cmp_lt_u32 vcc, 4, v{b}\nv_mov_b32 v{e}, 0x40000000\ns_nop 0\nv_cndmask_b32 v{XG_}, v{d}, v{e}, vcc\nv_cndmask_b32 v{XR_}, v{XR_}, v{SR_}, vcc')
        self.ts(1)
        p.wait(vm='all')
        p('s_barrier')
        p(f'buffer_load_dword v{NON}, v{ZERO}, {sr(SDBG,4)}, 0 offen sc1', 'NON')
        self.ts(2)
        RD = 80
        PV, ZV = 128, 130
        p(f'ds_read_b32 v{PV}, v{FA+12}\nds_read_b32 v{PV+1}, v{FA+13}', 'F0')
        for i in range(3):
            for k in range(4): p(f'ds_read_b128 {vr(RD + 16*i + 4*k, 4)}, v{FA + 4*i + k}', f'F{i}')
        p(f'ds_read_b32 v{ZV}, v{ZA} offset:8192\nds_read_b32 v{ZV+1}, v{ZA} offset:{8192+4096}', 'Z')
        p(f'ds_read_b32 v{ZV+2}, v{ZA+1} offset:24576\nds_read_b32 v{ZV+3}, v{ZA+1} offset:{24576+4096}', 'Z')
        p(f's_and_b32 s{t0}, s{S_WAVE}, 2\nv_or_b32 v{a}, s{t0}, v{g}\nv_cmp_eq_u32 vcc, 0, v{a}')
        FT, FO = 136, 144
        for i in range(3):
            p.wait(lg=f'F{i}')
            if i == 0: p(f'v_cndmask_b32 v{PV}, v{PV}, v{ZERO}, vcc\nv_cndmask_b32 v{PV+1}, v{PV+1}, v{ZERO}, vcc')
            A_, B_, C_, D_ = (RD + 16 * i + 4 * k for k in range(4))
            for k in range(8):
                p(f'v_lshlrev_b32 v{FT+k}, 16, v{A_ + k//2}' if k % 2 == 0 else f'v_and_b32 v{FT+k}, 0xffff0000, v{A_ + k//2}')
            for k in range(8): p(f'v_dot2c_f32_bf16 v{FT+k}, s{sSEL + k % 2}, v{B_ + k//2}')
            for w_, (src, prev) in enumerate(((C_, PV if i == 0 else C_ - 16), (D_, PV + 1 if i == 0 else D_ - 16))):
                for k in range(8):
                    if k == 0: p(f'v_dot2c_f32_bf16 v{FT}, s{sSEL + 2 + 2*w_}, v{prev}')
                    else:
                        el = 8 - k
                        p(f'v_dot2c_f32_bf16 v{FT+k}, s{sSEL + 2 + 2*w_ + el % 2}, v{src + el//2}')
            for k in range(4): p(f'v_cvt_pk_bf16_f32 v{FO + 4*i + k}, v{FT+2*k}, v{FT+2*k+1}')
            p(f'ds_write_b128 v{FW}, {vr(FO + 4*i, 4)} offset:{1024*i}')
        ZF = 156
        p.wait(lg='Z')
        p(f'v_cmp_eq_u32 vcc, 0, v{g}')
        for mt in range(2):
            p(f'v_lshlrev_b32 v{a}, 16, v{ZV+mt}\nv_dot2c_f32_bf16 v{a}, s{sSEL}, v{ZV+2+mt}\nv_mov_b32 v{ZF+2*mt+1}, 0')
            p(f'v_cndmask_b32 v{a}, v{ZERO}, v{a}, vcc\nv_cvt_pk_bf16_f32 v{ZF+2*mt}, v{a}, 0')
        p.wait(lg='all')
        p('s_barrier')
        self.ts(3)
        XF, G1 = 80, 160
        for pp in range(5):
            for mt in range(2): p(f'ds_read_b128 {vr(XF + 20*mt + 4*pp, 4)}, v{L16} offset:{FBUF + (5*mt + pp) * 1024}', f'XF{pp}')
        for tl in range(3):
            for mt in range(2):
                p(f'v_mfma_f32_16x16x16_bf16 {vr(G1 + 8*tl + 4*mt, 4)}, {vr(ZF + 2*mt, 2)}, {vr(MX + 22*tl, 2)}, 0')
        for pp in range(5):
            p.wait(lg=f'XF{pp}')
            for tl in range(3):
                for mt in range(2):
                    ac = vr(G1 + 8 * tl + 4 * mt, 4)
                    p(f'v_mfma_f32_16x16x32_bf16 {ac}, {vr(XF + 20*mt + 4*pp, 4)}, {vr(MX + 22*tl + 2 + 4*pp, 4)}, {ac}')
        F2, G2 = 124, 80
        for tl in range(3):
            for k in range(4): p(f'v_cvt_pk_bf16_f32 v{F2 + 4*tl + k}, v{G1 + 8*tl + 2*k}, v{G1 + 8*tl + 2*k + 1}')
        for tl in range(3):
            for rt in range(2):
                p(f'v_mfma_f32_16x16x32_bf16 {vr(G2 + 8*tl + 4*rt, 4)}, {vr(F2 + 4*tl, 4)}, {vr(AL + 4*rt, 4)}, 0')
        for tl in range(3):
            for rt in range(2):
                s_ = G2 + 8 * tl + 4 * rt; r = 136 + 4 * tl + 2 * rt
                p(f'v_cvt_pk_bf16_f32 v{r}, v{s_}, v{s_+1}\nv_cvt_pk_bf16_f32 v{r+1}, v{s_+2}, v{s_+3}')
                p(f'ds_write_b64 v{SW_}, {vr(r, 2)} offset:{rt * 6400 + tl * 128}')
        p.wait(lg='all')
        p('s_barrier')
        for i in range(3): p(f'ds_read_b128 {vr(80 + 4*i, 4)}, v{SR_} offset:{128*i}', f'S{i}')
        p(f'ds_read_b64 v[92:93], v{XR_}', 'S3')
        for i in range(3):
            p.wait(lg=f'S{i}')
            p(f's_mov_b32 s{t0}, {i * 65536}')
            p(f'buffer_store_dwordx4 {vr(80 + 4*i, 4)}, v{SG_ if i < 2 else SG2}, {sr(SWS,4)}, s{t0} offen sc1')
        lsk = self.lab('noex')
        p.wait(lg='all')
        p(f's_cmp_lg_u32 s{sPAR}, 0\ns_cbranch_scc1 {lsk}')
        p(f'buffer_store_dwordx2 v[92:93], v{XG_}, {sr(SWS,4)}, 0 offen sc1')
        p(f'{lsk}:')
        self.ts(4)
        p.wait(vm='all')
        self.get_nonce(NON, ZERO, sN, sCNT)
        p(f'v_mov_b32 v{NON}, s{sN}')
        p('s_barrier')
        lsk = self.lab('noflagb')
        p(f's_cmp_lg_u32 s{S_WAVE}, 0\ns_cbranch_scc1 {lsk}')
        p(f's_lshl_b32 s{t0}, s{sS2}, 7\ns_lshl_b32 s{t1}, s{sCLS}, 2\ns_add_u32 s{t0}, s{t0}, s{t1}\ns_add_u32 s{t0}, s{t0}, {WS_FG}\ns_mov_b64 exec, 1')
        p(f'buffer_store_dword v{NON}, v{ZERO}, {sr(SWS,4)}, s{t0} offen sc1')
        p(f's_mov_b64 exec, -1\n{lsk}:')
        self.ts(5)
        lb2 = self.lab('b2')
        p(f's_cmp_lt_u32 s{S_ID}, 80\ns_cbranch_scc1 {lb2}')
        self.ts_store()
        p(f's_endpgm\n{lb2}:')

        p.vm = []; p.lg = []
        EXL, ST2 = 32768, 40960
        p(f's_and_b32 s{sKAP}, s{S_ID}, 15\ns_lshr_b32 s{sDU}, s{S_ID}, 4')
        sT = 64
        p(f's_lshl_b32 s{t0}, s{S_WAVE}, 9\ns_add_u32 s{t0}, s{t0}, s{sKAP}\ns_and_b32 s{t1}, s{S_WAVE}, 1\ns_lshl_b32 s{t1}, s{t1}, 9')
        p(f's_lshr_b32 s{t2}, s{S_WAVE}, 1\ns_lshl_b32 s{t2}, s{t2}, 4\ns_add_u32 s{t1}, s{t1}, s{t2}\ns_cmp_eq_u32 s{sKAP}, 0\ns_cselect_b32 s{sT}, s{t1}, s{t0}')
        FC, FS, FX = 4, 20, 36
        p(f'v_lshl_add_u32 v{a}, v{n}, 5, s{sT}\nv_cvt_f32_u32 v{a}, v{a}\nv_mul_f32 v{a}, {fh(1/2048)}, v{a}')
        p(f'v_cvt_f32_u32 v{e}, v{g}\nv_mul_f32 v{e}, 4.0, v{e}\nv_mul_f32 v{c}, v{a}, v{e}\nv_add_f32 v{d}, {fh(0.25)}, v{c}')
        for h, bs in enumerate((c, d)):
            for jj in range(2):
                for i in range(8): p(f'v_fmamk_f32 v{TT+i}, v{a}, {fh(float(32*jj + (i if i < 4 else 12 + i)))}, v{bs}')
                for i in range(8): p(f'v_cos_f32 v{TT+i}, v{TT+i}')
                for i in range(4): p(f'v_cvt_pk_bf16_f32 v{FC + 8*h + 4*jj + i}, v{TT+2*i}, v{TT+2*i+1}')
        lk0, lk1, lkd = self.lab('k0'), self.lab('k0hi'), self.lab('kd')
        for i in range(4): p(f'v_mov_b32 v{FX+i}, 0')
        p(f's_cmp_eq_u32 s{sKAP}, 0\ns_cbranch_scc1 {lk0}')
        for i in range(16): p(f'v_mov_b32 v{FS+i}, v{FC+i}')
        p(f's_branch {lkd}\n{lk0}:\ns_cmp_ge_u32 s{S_WAVE}, 2\ns_cbranch_scc1 {lk1}')
        for i in range(8): p(f'v_mov_b32 v{FS+i}, v{FC+8+i}\nv_mov_b32 v{FC+8+i}, 0\nv_mov_b32 v{FS+8+i}, 0')
        p(f'v_or_b32 v{a}, s{S_WAVE}, v{n}\nv_cmp_eq_u32 vcc, 0, v{a}\nv_mov_b32 v{b}, 0x3f80\nv_mov_b32 v{c}, 1.0')
        for i in range(8): p(f'v_cndmask_b32 v{FC+i}, v{FC+i}, v{b}, vcc')
        for i in range(4): p(f'v_cndmask_b32 v{FX+i}, v{FX+i}, v{c}, vcc')
        p(f's_branch {lkd}\n{lk1}:')
        for i in range(8): p(f'v_mov_b32 v{FS+8+i}, v{FC+8+i}\nv_mov_b32 v{FC+8+i}, v{FC+i}\nv_mov_b32 v{FC+i}, 0\nv_mov_b32 v{FS+i}, 0')
        p(f'{lkd}:')
        GD, GA, XA, S2W, S2X, S2R, S2M, RA = 200, 201, 209, 210, 211, 212, 213, 214
        p(f's_and_b32 s{t0}, s{S_WAVE}, 1\ns_lshl_b32 s{t0}, s{t0}, 2\nv_add_u32 v{a}, s{t0}, v{g}\nv_lshlrev_b32 v{a}, 1, v{a}\nv_xor_b32 v{a}, v{a}, v{n}')
        p(f'v_lshlrev_b32 v{a}, 4, v{a}\nv_lshl_add_u32 v{GD}, v{g}, 8, v{a}')
        p(f'v_lshrrev_b32 v{a}, 2, v0\nv_and_b32 v{b}, 3, v0\nv_lshlrev_b32 v{b}, 3, v{b}\nv_lshl_add_u32 v{b}, v{a}, 8, v{b}\nv_and_b32 v{c}, 7, v{a}')
        for u in range(8): p(f'v_xor_b32 v{d}, {u}, v{c}\nv_lshl_add_u32 v{GA+u}, v{d}, 5, v{b}')
        p(f'v_lshlrev_b32 v{a}, 4, v{a}\nv_add_u32 v{XA}, {EXL}, v{a}')
        p(f's_mul_i32 s{t0}, s{S_WAVE}, 4608\ns_add_u32 s{t0}, s{t0}, {ST2}')
        p(f'v_mul_u32_u24 v{a}, 144, v{n}\nv_add_u32 v{S2X}, s{t0}, v{a}\nv_lshl_add_u32 v{S2W}, v{g}, 4, v{S2X}')
        p(f'v_lshrrev_b32 v{a}, 3, v0\nv_and_b32 v{b}, 7, v0\nv_mul_u32_u24 v{c}, 144, v{a}\nv_add_u32 v{c}, s{t0}, v{c}\nv_lshl_add_u32 v{S2R}, v{b}, 4, v{c}')
        p(f'v_xor_b32 v{d}, 7, v{b}\nv_lshl_add_u32 v{S2M}, v{d}, 4, v{c}')
        p(f's_lshl_b32 s{t0}, s{sDU}, 7\ns_add_u32 s{t1}, s{t0}, 1280\ns_sub_u32 s{t2}, {1280 + 1152}, s{t0}\ns_movk_i32 s{t3}, 2560')
        p(f'v_lshlrev_b32 v{b}, 4, v{b}\nv_lshl_add_u32 v{a}, v{a}, 5, s{sT}')
        for hh in range(2):
            if hh: p(f'v_add_u32 v{a}, 256, v{a}')
            p(f'v_sub_u32 v{c}, 2048, v{a}\nv_and_b32 v{c}, 2047, v{c}')
            p(f'v_mad_u32_u24 v{d}, v{a}, s{t3}, v{b}\nv_mad_u32_u24 v{e}, v{c}, s{t3}, v{b}')
            r = RA + 4 * hh
            if hh == 0:
                p(f'v_cmp_eq_u32 vcc, 0, v{a}\nv_add_u32 v{c}, {1024*2560}, v{d}\nv_add_u32 v{r+3}, s{t2}, v{d}\nv_add_u32 v{r+1}, s{t1}, v{e}')
                p(f'v_cndmask_b32 v{d}, v{d}, v{c}, vcc\nv_cndmask_b32 v{e}, v{e}, v{c}, vcc\nv_add_u32 v{r}, s{t1}, v{d}\nv_add_u32 v{r+2}, s{t2}, v{e}')
            else:
                p(f'v_add_u32 v{r}, s{t1}, v{d}\nv_add_u32 v{r+1}, s{t1}, v{e}\nv_add_u32 v{r+2}, s{t2}, v{e}\nv_add_u32 v{r+3}, s{t2}, v{d}')
        p(f's_mul_i32 s{t0}, s{sKAP}, 5\ns_add_u32 s{t0}, s{t0}, s{sDU}\ns_lshl_b32 s{t1}, s{t0}, 11\ns_lshl_b32 s{t0}, s{t0}, 15')
        p(f's_lshr_b32 s{t2}, s{S_WAVE}, 1\ns_lshl_b32 s{t2}, s{t2}, 14\ns_and_b32 s{t3}, s{S_WAVE}, 1\ns_lshl_b32 s{t3}, s{t3}, 10\ns_add_u32 s{t2}, s{t2}, s{t3}')
        p(f's_add_u32 s{t0}, s{t0}, s{t2}\ns_add_u32 s{t0}, s{t0}, {WS_G}')
        p(f's_lshl_b32 s{t3}, s{S_WAVE}, 9\ns_add_u32 s{t1}, s{t1}, s{t3}\ns_add_u32 s{t1}, s{t1}, {WS_EX}\ns_add_u32 s{t3}, s{t3}, {EXL}')
        p(f'v_lshlrev_b32 v{a}, 7, v0\ns_mov_b32 s65, {WS_FG}')
        self.ts(6)
        l0, l1 = self.lab('pollg'), self.lab('pollg_ok')
        p(f's_mov_b32 s{sCNT}, 0\n{l0}:')
        p(f'buffer_load_dwordx4 v[40:43], v{a}, {sr(SWS,4)}, s65 offen sc1')
        p('s_waitcnt vmcnt(0)')
        p(f'v_xor_b32 v40, v40, v{NON}\nv_xor_b32 v41, v41, v{NON}\nv_xor_b32 v42, v42, v{NON}\nv_xor_b32 v43, v43, v{NON}')
        p(f'v_or3_b32 v40, v40, v41, v42\nv_or_b32 v40, v40, v43\nv_cmp_ne_u32 vcc, 0, v40\ns_add_u32 s{sCNT}, s{sCNT}, 1\ns_cbranch_vccz {l1}')
        p(f's_cmp_gt_u32 s{sCNT}, {SPIN_CAP}\ns_cbranch_scc1 {l1}\ns_sleep 4\ns_branch {l0}\n{l1}:')
        self.ts(7)
        p(f's_mov_b32 m0, s{t3}\ns_mov_b64 exec, {sr(sE32,2)}')
        p(f'buffer_load_dwordx4 v{L16}, {sr(SWS,4)}, s{t1} offen sc1 lds')
        p('s_mov_b64 exec, -1')
        for i in range(8):
            p(f's_add_u32 m0, s{t2}, {2048*i}')
            if i: p(f's_add_u32 s{t0}, s{t0}, 2048')
            p(f'buffer_load_dwordx4 v{GD}, {sr(SWS,4)}, s{t0} offen sc1 lds')
        p.wait(vm='all')
        p('s_barrier')
        self.ts(8)
        AC, GB = 40, [80, 120]

        def greads(j):
            out = []
            for u in range(10):
                for hi in range(2):
                    dst = vr(GB[j & 1] + 4 * u + 2 * hi, 2)
                    if u < 8: out.append((f'ds_read_b64_tr_b16 {dst}, v{GA+u} offset:{(32*j + 16*hi) * 256}', f'G{j}_{u}'))
                    else: out.append((f'ds_read_b64_tr_b16 {dst}, v{XA} offset:{(32*j + 16*hi) * 16 + 8 * (u - 8)}', f'G{j}_{u}'))
            return out
        for x in greads(0): p(*x)
        for j in range(4):
            nx = greads(j + 1) if j < 3 else []
            for u in range(10):
                p.wait(lg=f'G{j}_{u}')
                is_sin = (4 <= u < 8) or u == 9
                F = (FS if is_sin else FC) + 4 * j
                ac = vr(AC + 4 * u, 4)
                first = j == 0 and not is_sin
                p(f'v_mfma_f32_16x16x32_bf16 {ac}, {vr(GB[j & 1] + 4*u, 4)}, {vr(F, 4)}, {0 if first else ac}')
                if j < 2 and not is_sin:
                    a2 = vr(AC + 4 * (u + 4 if u < 4 else 9), 4)
                    p(f'v_mfma_f32_16x16x32_bf16 {a2}, {vr(GB[j & 1] + 4*u, 4)}, {vr(FX, 4)}, {0 if j == 0 else a2}')
                for x in nx[2 * u:2 * u + 2]: p(*x)
        U = 80
        for ud in range(2):
            Pe, Po, Qe, Qo = (AC + 4 * (2 * cl + ud) for cl in range(4))
            r = U + 24 * ud
            for k in range(2):
                p(f'v_pk_add_f32 {vr(r+2*k,2)}, {vr(Pe+2*k,2)}, {vr(Qe+2*k,2)} neg_lo:[0,1] neg_hi:[0,1]')
                p(f'v_pk_add_f32 {vr(r+4+2*k,2)}, {vr(Po+2*k,2)}, {vr(Qo+2*k,2)} neg_lo:[0,1] neg_hi:[0,1]')
                p(f'v_pk_add_f32 {vr(r+8+2*k,2)}, {vr(Pe+2*k,2)}, {vr(Qe+2*k,2)}')
                p(f'v_pk_add_f32 {vr(r+12+2*k,2)}, {vr(Po+2*k,2)}, {vr(Qo+2*k,2)}')
            for k in range(4): p(f'v_cvt_pk_bf16_f32 v{r+16+k}, v{r+k}, v{r+4+k}')
            p(f'ds_write_b128 v{S2W}, {vr(r+16,4)} offset:{64*ud}')
            for k in range(4): p(f'v_cvt_pk_bf16_f32 v{r+20+k}, v{r+8+k}, v{r+12+k}')
            p(f'ds_write_b128 v{S2W}, {vr(r+20,4)} offset:{2304 + 64*ud}')
        p(f'v_sub_f32 v130, v{AC+32}, v{AC+36}\nv_add_f32 v131, v{AC+32}, v{AC+36}\nv_cvt_pk_bf16_f32 v130, v130, v130\nv_cvt_pk_bf16_f32 v131, v131, v131')
        p(f'ds_write_b32 v{S2X}, v130 offset:128\nds_write_b32 v{S2X}, v131 offset:{2304+128}')
        p(f's_mov_b32 s{t0}, 0xffff')
        p.wait(lg='all')
        R = 132
        k = 0
        for hh in range(2):
            for uu in range(2):
                off = uu * 2304 + hh * 8 * 144
                p(f'ds_read_b128 {vr(R + 10*k, 4)}, v{S2R} offset:{off}', f'f{k}')
                p(f'ds_read_b128 {vr(R + 10*k + 4, 4)}, v{S2M} offset:{off}', f'm{k}')
                p(f'ds_read_b32 v{R + 10*k + 8}, v{S2M} offset:{off + 16}', f'm{k}')
                k += 1
        k = 0
        for hh in range(2):
            for uu in range(2):
                p.wait(lg=f'f{k}')
                p(f'buffer_store_dwordx4 {vr(R + 10*k, 4)}, v{RA + 4*hh + uu}, {sr(SOUT,4)}, 0 offen')
                p.wait(lg=f'm{k}')
                D = R + 10 * k + 4; o = 176 + 4 * k
                p(f'v_bfi_b32 v{o}, s{t0}, v{D+4}, v{D+3}\nv_bfi_b32 v{o+1}, s{t0}, v{D+3}, v{D+2}\nv_bfi_b32 v{o+2}, s{t0}, v{D+2}, v{D+1}\nv_bfi_b32 v{o+3}, s{t0}, v{D+1}, v{D}')
                p(f'buffer_store_dwordx4 {vr(o, 4)}, v{RA + 4*hh + 2 + uu}, {sr(SOUT,4)}, 0 offen')
                k += 1
        if self.ts_on:
            self.ts(9)
            p('s_waitcnt vmcnt(0)')
            self.ts(10)
        self.ts_store()
        p('L_exit:\ns_endpgm')

    def build(self):
        self.entry(); self.branchA(); self.branchB()
        hdr = open('cdna_kernels/' + KN + '.s.ref').read().split('; Override launch')[0]
        hdr += '; One launch: workgroups 0..255 run branch A (QKV GEMM -> windowed attention -> hand-off -> output projection),\n'
        hdr += '; workgroups 256..511 run branch B (2-D DFT real part: folded hidden DFT + radix-32 stage -> hand-off -> radix-64 stage).\n'
        hdr += '; @launch grid=(512,1,1) block=(256,1,1) lds=81920\n'
        hdr += f'.amdgcn_target "amdgcn-amd-amdhsa--gfx950"\n.text\n.globl {KN}_kernel\n.p2align 8\n.type {KN}_kernel,@function\n'
        tail = f'''.section .rodata,"a"
.p2align 6
.amdhsa_kernel {KN}_kernel
  .amdhsa_next_free_vgpr 256
  .amdhsa_next_free_sgpr 102
  .amdhsa_accum_offset 256
  .amdhsa_group_segment_fixed_size 0
  .amdhsa_kernarg_size 88
  .amdhsa_user_sgpr_count 2
  .amdhsa_user_sgpr_kernarg_segment_ptr 1
  .amdhsa_system_sgpr_workgroup_id_x 1
  .amdhsa_float_denorm_mode_32 3
.end_amdhsa_kernel
'''
        return hdr + self.p.text() + tail


if __name__ == '__main__':
    import argparse
    ap = argparse.ArgumentParser()
    ap.add_argument('-o', default='cdna_kernels/' + KN + '.s')
    ap.add_argument('--ts', action='store_true')
    ap.add_argument('--rot', default='1,3')
    ap.add_argument('--nomimic', action='store_true')
    ap.add_argument('--prio', type=int, default=0)
    ap.add_argument('--nocodepf', action='store_true')
    a = ap.parse_args()
    g = Gen(ts=a.ts, rot=tuple(int(x) for x in a.rot.split(',')), mimic=not a.nomimic, prio=a.prio, codepf=not a.nocodepf)
    s = g.build()
    open(a.o, 'w').write(s)
    print('written', a.o, 'instructions', sum(1 for i in g.p.ins if i.kind != 'none'), 'auto nops', g.p.nops)
```

```python
import sys, math
from asmlib import *

KN = 'concat_heads__sliding_local_dilated__spectral_fnet__prompt'
WS_O, WS_G, WS_EX, WS_FO, WS_FG, WS_TS, WS_SIZE = 0, 0x300000, 0x600000, 0x680000, 0x690000, 0x700000, 0x800000
SPIN_CAP = 20000

SX, SW, SWO, SWS, SOUT, SDBG = 20, 24, 28, 32, 36, 40
S_WAVE, S_ID = 18, 19
V_TS = 3


class Gen:
    def __init__(self, ts=False, rot=(1, 3), mimic=True, prio=0, codepf=True, calib=0):
        self.calib = calib
        self.p = Prog()
        self.ts_on = ts
        self.rot = rot
        self.mimic = mimic
        self.prio = prio
        self.codepf = codepf
        self.nlab = 0

    def lab(self, s):
        self.nlab += 1
        return f'L_{s}_{self.nlab}'

    def ts(self, k):
        if self.ts_on:
            self.p(f's_memrealtime s[100:101]\ns_waitcnt lgkmcnt(0)\nv_writelane_b32 v{V_TS}, s100, {k}')

    def ts_store(self):
        if self.ts_on:
            p = self.p
            p(f's_lshl_b32 s100, s2, 2\ns_add_u32 s100, s100, s{S_WAVE}\ns_lshl_b32 s100, s100, 6\ns_add_u32 s100, s100, {WS_TS}')
            p('v_mbcnt_lo_u32_b32 v1, -1, 0\nv_mbcnt_hi_u32_b32 v1, -1, v1\nv_lshlrev_b32 v1, 2, v1')
            p('s_mov_b64 exec, 0xffff')
            p(f'buffer_store_dword v{V_TS}, v1, {sr(SWS,4)}, s100 offen')
            p('s_mov_b64 exec, -1')

    def srd(self, d, base, nbytes):
        self.p(f's_mov_b32 s{d}, s{base}\ns_and_b32 s{d+1}, s{base+1}, 0xffff\ns_mov_b32 s{d+2}, {nbytes}\ns_mov_b32 s{d+3}, 0x20000')

    def get_nonce(self, vn, vz, sn, scnt):
        p = self.p
        l0, l1 = self.lab('nonce'), self.lab('nonce_ok')
        p(f's_mov_b32 s{scnt}, 0')
        p(f'{l0}:')
        p(f'v_readfirstlane_b32 s{sn}, v{vn}')
        p(f's_cmp_lg_u32 s{sn}, 0\ns_cbranch_scc1 {l1}')
        p(f's_add_u32 s{scnt}, s{scnt}, 1\ns_cmp_gt_u32 s{scnt}, {SPIN_CAP}\ns_cbranch_scc1 {l1}')
        p('s_sleep 2')
        n0 = len(p.vm)
        p(f'buffer_load_dword v{vn}, v{vz}, {sr(SDBG,4)}, 0 offen sc1')
        p('s_waitcnt vmcnt(0)')
        del p.vm[n0:]
        p(f's_branch {l0}')
        p(f'{l1}:')

    def entry(self):
        p = self.p
        p(f'{KN}_kernel:')
        p('s_cmp_ge_u32 s2, 512\ns_cbranch_scc1 L_exit')
        p('s_load_dwordx4 s[4:7], s[0:1], 0\ns_load_dwordx4 s[8:11], s[0:1], 16\ns_load_dwordx4 s[12:15], s[0:1], 64\ns_load_dwordx2 s[16:17], s[0:1], 80')
        if self.ts_on:
            p(f'v_mov_b32 v{V_TS}, 0\ns_memrealtime s[100:101]')
        if self.calib: p('s_memrealtime s[100:101]')
        p('v_lshrrev_b32 v1, 6, v0\nv_and_b32 v0, 63, v0')
        p(f'v_readfirstlane_b32 s{S_WAVE}, v1')
        p(f's_and_b32 s{S_ID}, s2, 255')
        p('s_cmp_ge_u32 s2, 256\ns_cbranch_scc1 L_B')

    def branchA(self):
        p = self.p
        MASK0 = 44
        sQ, sRB, sK, sMW, sMX, sN, sCNT = 66, 67, 68, 70, 71, 86, 87
        sE48, sE32 = 72, 74
        t0, t1, t2, t3 = 76, 77, 78, 79
        sC0 = 80
        sP = 88
        sOW, sMO = 98, 99
        ACC = 4
        FB = [80, 116]
        WD, XD, XR, WRa, WRb = 224, 228, 231, 233, 234
        EW0, EW1, EWb = 235, 236, 237
        OD = 238
        QK, VA, VB, OS1, OS2 = 243, 244, 245, 246, 247
        WOR, WOR2, L16, ZERO, NON, FLG = 248, 249, 250, 251, 252, 253
        SGW = 254
        SGR, SGG = 152, 155
        a, b, c, d, e = 160, 161, 162, 163, 164
        XB = 61440
        EXB = 40960

        def acc(sg, t):
            return ACC + 4 * (5 * sg + t) if sg < 3 else ACC + 60 + 4 * (t - 1)

        p(f's_and_b32 s{t0}, s2, 7\ns_lshr_b32 s{t1}, s2, 3')
        p(f's_and_b32 s{t2}, s{t0}, 1\ns_lshl_b32 s{t2}, s{t2}, 2\ns_and_b32 s{t3}, s{t1}, 3\ns_add_u32 s{sQ}, s{t2}, s{t3}')
        p(f's_lshr_b32 s{t0}, s{t0}, 1\ns_lshl_b32 s{t0}, s{t0}, 3\ns_lshr_b32 s{t1}, s{t1}, 2\ns_add_u32 s{sRB}, s{t0}, s{t1}')
        p(f's_mul_i32 s{t1}, s{t1}, {self.rot[0]}\ns_mul_i32 s{t3}, s{t3}, {self.rot[1]}\ns_add_u32 s{t1}, s{t1}, s{t3}')
        p(f's_mul_i32 s{t2}, s{t1}, 26\ns_lshr_b32 s{t2}, s{t2}, 8\ns_mul_i32 s{t2}, s{t2}, 10\ns_sub_u32 s{t1}, s{t1}, s{t2}')
        p(f's_lshl_b32 s{sP}, s{t1}, 7')
        p(f's_mul_i32 s{sMW}, s{S_WAVE}, 3840\ns_mul_i32 s{sMX}, s{S_WAVE}, 2560\ns_add_u32 s{sMX}, s{sMX}, {XB}')
        p(f's_mov_b32 s{sE48}, -1\ns_mov_b32 s{sE48+1}, 0xffff\ns_mov_b32 s{sE32}, -1\ns_mov_b32 s{sE32+1}, 0')
        p(f's_mul_i32 s{t0}, s{S_WAVE}, 20\ns_lshl_b32 s{t2}, s{sRB}, 6\ns_sub_u32 s{t2}, s{t2}, 16\ns_movk_i32 s{t3}, 1280')
        p(f'v_lshrrev_b32 v{a}, 3, v0\nv_add_u32 v{a}, s{t0}, v{a}\nv_and_b32 v{b}, 7, v0')
        for i in range(3):
            if i: p(f'v_add_u32 v{a}, 8, v{a}')
            p(f'v_lshlrev_b32 v{c}, 1, v{a}')
            p(f'v_cmp_lt_u32 vcc, 7, v{a}\nv_subrev_u32 v{d}, 15, v{c}\ns_nop 0\nv_cndmask_b32 v{e}, v{c}, v{d}, vcc')
            p(f'v_cmp_lt_u32 vcc, 15, v{a}\nv_subrev_u32 v{d}, 16, v{c}\ns_nop 0\nv_cndmask_b32 v{e}, v{e}, v{d}, vcc')
            p(f'v_cmp_lt_u32 vcc, 47, v{a}\nv_subrev_u32 v{d}, 79, v{c}\ns_nop 0\nv_cndmask_b32 v{e}, v{e}, v{d}, vcc')
            p(f'v_add_u32 v{e}, s{t2}, v{e}\nv_mul_lo_u32 v{e}, v{e}, s{t3}')
            p(f'v_bfe_u32 v{c}, v{a}, 1, 3\nv_xor_b32 v{c}, v{c}, v{b}\nv_lshl_add_u32 v{XD+i}, v{c}, 4, v{e}')
        p('s_waitcnt lgkmcnt(0)')
        if self.ts_on: p(f'v_writelane_b32 v{V_TS}, s100, 0')
        self.srd(SX, 4, 2621440)
        self.srd(SWS, 16, WS_SIZE)
        self.srd(SW, 6, 2457600)
        if self.prio: p(f's_setprio {self.prio}')
        lne = self.lab('noel')
        p(f's_or_b32 s{t0}, s2, s{S_WAVE}\ns_cmp_lg_u32 s{t0}, 0\ns_cbranch_scc1 {lne}')
        p(f'v_lshrrev_b32 v{c}, 1, v0\nv_lshlrev_b32 v{c}, 7, v{c}\nv_and_b32 v{d}, 1, v0\nv_lshl_add_u32 v{c}, v{d}, 4, v{c}\nv_lshlrev_b32 v{d}, 7, v0')
        p(f's_mov_b32 s{t0}, {WS_FO}\ns_mov_b32 s{t1}, {WS_FG}')
        n0 = len(p.vm)
        p(f'buffer_load_dwordx4 v[168:171], v{c}, {sr(SWS,4)}, s{t0} offen sc1')
        p(f'buffer_load_dwordx4 v[172:175], v{d}, {sr(SWS,4)}, s{t1} offen sc1')
        del p.vm[n0:]
        p(f'{lne}:')

        def dma_x(P):
            out = []
            for i in range(3):
                s = f's_add_u32 m0, s{sMX}, {(P & 1) * 10240 + 1024 * i}\n'
                if i == 2: s += f's_mov_b64 exec, {sr(sE32,2)}\n'
                s += f'buffer_load_dwordx4 v{XD+i}, {sr(SX,4)}, s{sP+P} offen lds'
                if i == 2: s += '\ns_mov_b64 exec, -1'
                out.append((s, f'X{P}'))
            return out

        def dma_w(s_, only=None):
            out = []
            for i in range(4):
                s = ''
                if i == 0:
                    s += f's_mul_i32 s{sK}, s{sP + (s_ >> 1)}, 1920\n'
                    if s_ & 1: s += f's_add_u32 s{sK}, s{sK}, 122880\n'
                s += f's_add_u32 m0, s{sMW}, {(s_ & 3) * 15360 + 1024 * i}\n'
                if i == 3: s += f's_mov_b64 exec, {sr(sE48,2)}\n'
                s += f'buffer_load_dwordx4 v{WD+i}, {sr(SW,4)}, s{sK} offen lds'
                if i == 3: s += '\ns_mov_b64 exec, -1'
                out.append((s, f'W{s_}'))
            return out

        def wo_base(st):
            return [0, 20480, 0, 40960, 61440][st >> 2] + (st & 3) * 5120

        def dma_wo(g):
            out = []
            for i in range(5):
                s = ''
                if i == 0: s += f's_add_u32 s{sK}, s{sOW}, {g * 4 * 40960}\n'
                s += f's_add_u32 m0, s{sMO}, {wo_base(4 * g) + 1024 * i}\n'
                s += f'buffer_load_dwordx4 v{OD+i}, {sr(SWO,4)}, s{sK} offen lds'
                out.append((s, f'WO{g}'))
            return out

        for s, tg in dma_x(0): p(s, tg)
        p(f's_mul_i32 s{t0}, s{S_WAVE}, 240\ns_movk_i32 s{t1}, 2185\ns_mul_i32 s{t2}, s{sQ}, 160\ns_movk_i32 s{t3}, 3840')
        w0 = dma_w(0)
        for i in range(4):
            p(f'v_add_u32 v{a}, s{t0}, v0')
            if i: p(f'v_add_u32 v{a}, {64*i}, v{a}')
            p(f'v_mul_u32_u24 v{b}, s{t1}, v{a}\nv_lshrrev_b32 v{b}, 16, v{b}')
            p(f'v_mul_u32_u24 v{c}, 30, v{b}\nv_sub_u32 v{c}, v{a}, v{c}')
            p(f'v_mul_u32_u24 v{d}, 26, v{c}\nv_lshrrev_b32 v{d}, 8, v{d}')
            p(f'v_mul_u32_u24 v{d}, 1120, v{d}\nv_lshl_add_u32 v{d}, v{c}, 4, v{d}\nv_add_u32 v{d}, s{t2}, v{d}')
            p(f'v_and_b32 v{c}, 12, v{b}\nv_lshlrev_b32 v{c}, 1, v{c}\nv_bfe_u32 v{e}, v{b}, 4, 1\nv_lshl_add_u32 v{c}, v{e}, 2, v{c}')
            p(f'v_and_b32 v{b}, 3, v{b}\nv_add_u32 v{c}, v{c}, v{b}\nv_mad_u32_u24 v{WD+i}, v{c}, s{t3}, v{d}')
            p(*w0[i])
        for s, tg in dma_w(1): p(s, tg)
        for P in range(1, 10):
            p(f's_add_u32 s{sP+P}, s{sP+P-1}, 128\ns_cmp_ge_u32 s{sP+P}, 1280\ns_cselect_b32 s{t0}, 1280, 0\ns_sub_u32 s{sP+P}, s{sP+P}, s{t0}')
        for s, tg in dma_x(1) + dma_w(2) + dma_w(3): p(s, tg)

        self.srd(SWO, 8, 819200)
        self.srd(SOUT, 12, 5242880)
        self.srd(SDBG, 14, 256)
        n, g = 165, 166
        p(f'v_and_b32 v{n}, 15, v0\nv_lshrrev_b32 v{g}, 4, v0\nv_mov_b32 v{ZERO}, 0\nv_lshlrev_b32 v{L16}, 4, v0')
        p(f'v_lshrrev_b32 v{a}, 1, v{n}\nv_xor_b32 v{a}, v{a}, v{g}\nv_lshlrev_b32 v{a}, 4, v{a}\nv_lshl_add_u32 v{a}, v{n}, 7, v{a}')
        p(f'v_add_u32 v{XR}, {XB}, v{a}\nv_xor_b32 v{XR+1}, 64, v{XR}')
        p(f'v_lshrrev_b32 v{a}, 2, v0\nv_and_b32 v{b}, 3, v0\nv_lshlrev_b32 v{b}, 3, v{b}')
        p(f'v_mul_u32_u24 v{c}, 480, v{a}\nv_add_u32 v{c}, v{c}, v{b}')
        p(f's_mul_i32 s{t0}, s{S_WAVE}, 96\ns_add_u32 s{t0}, s{t0}, 96\ns_min_u32 s{t1}, s{S_WAVE}, 2\ns_lshl_b32 s{t1}, s{t1}, 5')
        p(f'v_add_u32 v{WRa}, s{t0}, v{c}\nv_add_u32 v{WRb}, s{t1}, v{c}')
        p(f'v_mul_u32_u24 v{c}, 160, v{a}\nv_add_u32 v{WOR}, v{c}, v{b}\nv_add_u32 v{WOR2}, 40960, v{WOR}')
        p(f'v_lshlrev_b32 v{a}, 3, v{g}\nv_add_u32 v{a}, {EXB}, v{a}')
        p(f'v_mul_u32_u24 v{b}, 488, v{n}\nv_add_u32 v{b}, v{b}, v{a}\nv_add_u32 v{c}, {8*488}, v{b}')
        p(f'v_add_u32 v{EW1}, s{t0}, v{c}\nv_add_u32 v{EWb}, s{t1}, v{c}')
        p(f'v_bfe_u32 v{c}, v0, 3, 1\nv_mul_u32_u24 v{c}, {32*488}, v{c}\nv_add_u32 v{b}, v{b}, v{c}\nv_add_u32 v{EW0}, s{t0}, v{b}')
        p(f's_and_b32 s{t0}, s{S_WAVE}, 1\ns_lshr_b32 s{t1}, s{S_WAVE}, 1')
        p(f's_mul_i32 s{t2}, s{t0}, {40*488}\ns_mul_i32 s{t3}, s{t1}, 80\ns_add_u32 s{t2}, s{t2}, s{t3}\ns_add_u32 s{t2}, s{t2}, {EXB}')
        hh = 167
        p(f'v_lshrrev_b32 v{hh}, 5, v0\nv_mul_u32_u24 v{a}, 40, v{hh}\nv_add_u32 v{a}, s{t2}, v{a}')
        p(f'v_and_b32 v{b}, 31, v0\nv_mul_u32_u24 v{b}, 488, v{b}\nv_add_u32 v{QK}, v{a}, v{b}')
        p(f'v_and_b32 v{b}, 16, v0\nv_and_b32 v{c}, 3, v0\nv_lshl_add_u32 v{b}, v{c}, 2, v{b}\nv_bfe_u32 v{c}, v0, 2, 2\nv_add_u32 v{b}, v{b}, v{c}')
        p(f'v_mul_u32_u24 v{b}, 488, v{b}\nv_add_u32 v{a}, v{a}, v{b}\nv_add_u32 v{a}, 320, v{a}')
        p(f'v_lshl_add_u32 v{VA}, v{hh}, 3, v{a}\nv_xor_b32 v{c}, 1, v{hh}\nv_lshl_add_u32 v{VB}, v{c}, 5, v{a}')
        p(f's_lshl_b32 s{t2}, s{sRB}, 2\ns_lshl_b32 s{t0}, s{t0}, 1\ns_add_u32 s{t2}, s{t2}, s{t0}\ns_mul_i32 s{t2}, s{t2}, 20480')
        p(f's_mul_i32 s{t3}, s{sQ}, 2560\ns_add_u32 s{t2}, s{t2}, s{t3}\ns_mul_i32 s{t1}, s{t1}, 1280\ns_add_u32 s{t2}, s{t2}, s{t1}')
        p(f'v_and_b32 v{a}, 1, v{g}\nv_mul_u32_u24 v{a}, 20480, v{a}\nv_lshl_add_u32 v{a}, v{n}, 4, v{a}\nv_add_u32 v{a}, s{t2}, v{a}')
        p(f'v_mul_u32_u24 v{b}, 768, v{hh}\nv_add_u32 v{OS1}, v{a}, v{b}\nv_add_u32 v{a}, 512, v{a}\nv_lshl_or_b32 v{OS2}, v{hh}, 30, v{a}')
        p(f's_cmp_eq_u32 s{sRB}, 0\ns_cselect_b32 s{t0}, 8, 0')
        p(f'v_and_b32 v{a}, 3, v0\nv_add_u32 v{b}, 1, v{a}\nv_and_b32 v{c}, 28, v0\nv_sub_u32 v{c}, s{t0}, v{c}\nv_max_i32 v{b}, v{b}, v{c}')
        p(f'v_add_u32 v{a}, 8, v{a}\nv_sub_u32 v{a}, v{a}, v{b}')
        for m in range(1, 12):
            p(f'v_sub_u32 v{c}, {m}, v{b}\nv_cmp_le_u32 {sr(MASK0 + 2*(m-1), 2)}, v{c}, v{a}')
        p(f's_movk_i32 s{t1}, 6554\ns_mul_i32 s{t2}, s{sQ}, 160\ns_movk_i32 s{t3}, 1280')
        p(f's_mul_i32 s{sOW}, s{S_WAVE}, 40960\ns_mul_i32 s{sMO}, s{S_WAVE}, 5120')
        for i in range(5):
            p(f'v_add_u32 v{a}, {64*i}, v0\nv_mul_u32_u24 v{b}, s{t1}, v{a}\nv_lshrrev_b32 v{b}, 16, v{b}')
            p(f'v_mul_u32_u24 v{c}, 10, v{b}\nv_sub_u32 v{d}, v{a}, v{c}\nv_lshlrev_b32 v{d}, 4, v{d}\nv_add_u32 v{d}, s{t2}, v{d}')
            p(f'v_and_b32 v{c}, 12, v{b}\nv_lshlrev_b32 v{c}, 1, v{c}\nv_bfe_u32 v{e}, v{b}, 4, 1\nv_lshl_add_u32 v{c}, v{e}, 2, v{c}')
            p(f'v_and_b32 v{b}, 3, v{b}\nv_add_u32 v{c}, v{c}, v{b}\nv_mad_u32_u24 v{OD+i}, v{c}, s{t3}, v{d}')
        p(f's_lshl_b32 s{t0}, s{S_WAVE}, 12\ns_add_u32 s{t0}, s{t0}, 20480')
        p(f'v_mul_u32_u24 v{a}, 176, v{n}\nv_lshl_add_u32 v{a}, v{g}, 3, v{a}\nv_add_u32 v{SGW}, s{t0}, v{a}')
        p(f'v_and_b32 v{a}, 7, v0\nv_lshlrev_b32 v{FLG}, 2, v{a}')
        sc = f2u(20 ** -0.5); l2e = f2u(math.log2(math.e))
        p(f's_mov_b32 s{sC0}, {sc}\ns_mov_b32 s{sC0+1}, {sc}\ns_mov_b32 s{sC0+2}, {l2e}\ns_mov_b32 s{sC0+3}, {l2e}\ns_mov_b32 s{sC0+4}, 0xffff0000\ns_mov_b32 s{sC0+5}, 0xff800000')

        def reads(s_):
            fb = FB[s_ & 1]; out = []
            xb = ((s_ >> 1) & 1) * 10240; wb = (s_ & 3) * 15360
            for sg in range(4):
                for hi in range(2):
                    ad, off = (WRa, 32 * sg) if sg < 3 else (WRb, 0)
                    out.append((f'ds_read_b64_tr_b16 {vr(fb + 20 + 4*sg + 2*hi, 2)}, v{ad} offset:{wb + hi * 7680 + off}', f'R{s_}'))
            for t in range(5):
                out.insert(2 + 2 * t if t < 4 else len(out), (f'ds_read_b128 {vr(fb + 4*t, 4)}, v{XR + (s_ & 1)} offset:{xb + t * 2048}', f'R{s_}'))
            return out

        tiles = [(sg, t) for t in range(5) for sg in range(4) if not (sg == 3 and t == 0)]

        def mfma(s_, sg, t):
            fb = FB[s_ & 1]; ac = vr(acc(sg, t), 4)
            return f'v_mfma_f32_16x16x32_bf16 {ac}, {vr(fb + 20 + 4*sg, 4)}, {vr(fb + 4*t, 4)}, {ac if s_ else 0}'

        self.ts(1)
        p.wait(vm=['X0', 'W0'])
        p('s_barrier')
        for s, tg in reads(0): p(s, tg)
        lne = self.lab('noel2'); ll = self.lab('el')
        p(f's_or_b32 s{t0}, s2, s{S_WAVE}\ns_cmp_lg_u32 s{t0}, 0\ns_cbranch_scc1 {lne}')
        p(f's_mov_b32 s{t0}, 0\n{ll}:\ns_add_u32 s{t0}, s{t0}, 1\ns_mov_b64 s[{t2}:{t3}], 0')
        for r in range(168, 176):
            p(f'v_cmp_eq_u32 vcc, s{t0}, v{r}\ns_or_b64 s[{t2}:{t3}], s[{t2}:{t3}], vcc')
        p(f's_cmp_lg_u64 s[{t2}:{t3}], 0\ns_cbranch_scc1 {ll}')
        p(f'v_mov_b32 v168, s{t0}\ns_mov_b64 exec, 1')
        n0 = len(p.vm)
        p(f'buffer_store_dword v168, v{ZERO}, {sr(SDBG,4)}, 0 offen sc1')
        del p.vm[n0:]
        p(f's_mov_b64 exec, -1\n{lne}:')
        p.wait(vm=['W1'], lg='all')
        self.ts(2)
        p('s_barrier')

        CV = FB[0]
        for s_ in range(20):
            fill = []
            dm = []
            if s_ & 1 and (s_ + 3) // 2 <= 9: dm += dma_x((s_ + 3) // 2)
            if s_ + 4 <= 19: dm += dma_w(s_ + 4)
            if s_ == 17: dm += dma_wo(0)
            if s_ == 18: dm += dma_wo(1)
            rd = reads(s_ + 1) if s_ < 19 else []
            slots = [[] for _ in range(19)]
            for i, x in enumerate(rd): slots[i].append(x)
            for i, x in enumerate(dm): slots[min(18, 1 + (i * 17) // max(1, len(dm)))].append(x)
            for i, (sg, t) in enumerate(tiles):
                p(mfma(s_, sg, t))
                for x in slots[i]: p(*x)
                if s_ == 19 and i >= 3:
                    self.exw(tiles[i - 3], acc, CV, i - 3, EW0, EW1, EWb)
            if s_ < 19:
                w = []
                if s_ + 2 <= 19:
                    w.append(f'W{s_+2}')
                    if s_ % 2 == 0: w.append(f'X{(s_+2)//2}')
                p.wait(vm=w or None, lg='all')
                if s_ in (3, 9, 15, 18): self.ts({3: 3, 9: 4, 15: 5, 18: 6}[s_])
                p('s_barrier')
        for i in range(16, 19): self.exw(tiles[i], acc, CV, i, EW0, EW1, EWb)
        p(f'buffer_load_dword v{NON}, v{ZERO}, {sr(SDBG,4)}, 0 offen sc1', 'NON')
        p.wait(lg='all')
        p('s_barrier')
        self.ts(7)

        Q, K, V, S, T, O, PP = 4, 16, 48, 80, 92, 104, 124
        for cc in range(5): p(f'ds_read_b64 {vr(Q + 2*cc, 2)}, v{QK} offset:{8*488 + 8*cc}', 'Q')
        for cc in range(5):
            for kb in range(3): p(f'ds_read_b64 {vr(K + 10*kb + 2*cc, 2)}, v{QK} offset:{4*kb*488 + 160 + 8*cc}', f'K{cc}')
        vrd = []
        for t in range(5):
            for kb in range(3):
                ad, off = (VA, 8 * t) if t < 4 else (VB, 0)
                vrd.append(f'ds_read_b64_tr_b16 {vr(V + 6*t + 2*kb, 2)}, v{ad} offset:{4*kb*488 + off}')
        for cc in range(5):
            p.wait(lg=f'K{cc}')
            for kb in range(3):
                s4 = vr(S + 4 * kb, 4)
                p(f'v_mfma_f32_4x4x4_16b_bf16 {s4}, {vr(K + 10*kb + 2*cc, 2)}, {vr(Q + 2*cc, 2)}, {s4 if cc else 0}')
            for x in vrd[3 * cc:3 * cc + 3]: p(x, 'V')
        cS, cL, cM, cI = sr(sC0, 2), sr(sC0 + 2, 2), f's{sC0+4}', f's{sC0+5}'

        def round16(src, dst):
            for i in range(6): p(f'v_cvt_pk_bf16_f32 v{T+i}, v{src+2*i}, v{src+2*i+1}')
            for i in range(6): p(f'v_lshlrev_b32 v{dst+2*i}, 16, v{T+i}\nv_and_b32 v{dst+2*i+1}, {cM}, v{T+i}')
        if self.mimic: round16(S, S)
        for i in range(6): p(f'v_pk_mul_f32 {vr(S+2*i,2)}, {vr(S+2*i,2)}, {cS}')
        if self.mimic: round16(S, S)
        p(f'v_mov_b32 v{T}, {cI}\nv_mov_b32 v{S}, {cI}')
        for m in range(1, 12): p(f'v_cndmask_b32 v{S+m}, v{T}, v{S+m}, {sr(MASK0 + 2*(m-1), 2)}')
        p(f'v_max3_f32 v{T}, v{S+1}, v{S+2}, v{S+3}\nv_max3_f32 v{T+1}, v{S+4}, v{S+5}, v{S+6}\nv_max3_f32 v{T+2}, v{S+7}, v{S+8}, v{S+9}')
        p(f'v_max3_f32 v{T}, v{T}, v{S+10}, v{S+11}\nv_max3_f32 v{T}, v{T}, v{T+1}, v{T+2}')
        p(f'v_mov_b32 v{T+1}, v{T}')
        for i in range(6): p(f'v_pk_add_f32 {vr(S+2*i,2)}, {vr(S+2*i,2)}, {vr(T,2)} neg_lo:[0,1] neg_hi:[0,1]')
        for i in range(6): p(f'v_pk_mul_f32 {vr(S+2*i,2)}, {vr(S+2*i,2)}, {cL}')
        for m in range(12): p(f'v_exp_f32 v{S+m}, v{S+m}')
        p(f'v_pk_add_f32 {vr(T,2)}, {vr(S,2)}, {vr(S+2,2)}\nv_pk_add_f32 {vr(T+2,2)}, {vr(S+4,2)}, {vr(S+6,2)}\nv_pk_add_f32 {vr(T+4,2)}, {vr(S+8,2)}, {vr(S+10,2)}')
        p(f'v_pk_add_f32 {vr(T,2)}, {vr(T,2)}, {vr(T+2,2)}\nv_pk_add_f32 {vr(T,2)}, {vr(T,2)}, {vr(T+4,2)}')
        p(f'v_add_f32 v{T}, v{T}, v{T+1}\nv_rcp_f32 v{T}, v{T}\ns_nop 0\nv_mov_b32 v{T+1}, v{T}')
        for i in range(6): p(f'v_pk_mul_f32 {vr(S+2*i,2)}, {vr(S+2*i,2)}, {vr(T,2)}')
        for i in range(6): p(f'v_cvt_pk_bf16_f32 v{PP+i}, v{S+2*i}, v{S+2*i+1}')
        p.wait(lg='V')
        for kb in range(3):
            for t in range(5):
                o4 = vr(O + 4 * t, 4)
                p(f'v_mfma_f32_4x4x4_16b_bf16 {o4}, {vr(V + 6*t + 2*kb, 2)}, {vr(PP + 2*kb, 2)}, {o4 if kb else 0}')
        OC = 132
        for t in (4, 0, 1, 2, 3):
            dst = OC + 2 * t
            p(f'v_cvt_pk_bf16_f32 v{dst}, v{O+4*t}, v{O+4*t+1}\nv_cvt_pk_bf16_f32 v{dst+1}, v{O+4*t+2}, v{O+4*t+3}')
        p(f'v_permlane32_swap_b32 v{OC+8}, v{OC+10}\nv_permlane32_swap_b32 v{OC+9}, v{OC+11}')
        p(f'buffer_store_dwordx4 {vr(OC,4)}, v{OS1}, {sr(SWS,4)}, 0 offen sc1', 'OST')
        p(f'buffer_store_dwordx4 {vr(OC+4,4)}, v{OS1}, {sr(SWS,4)}, 0 offen offset:256 sc1', 'OST')
        p(f'buffer_store_dwordx4 {vr(OC+8,4)}, v{OS2}, {sr(SWS,4)}, 0 offen sc1', 'OST')
        p.wait(vm=['WO1', 'NON'])
        self.ts(8)
        p('s_barrier')
        OF, WR, DB, AC2 = 4, 144, 84, 124
        dm = dma_wo(3) + dma_wo(4)

        def wo_reads(st, dst):
            out = []
            base = wo_base(st); ad = WOR
            if base >= 40960: base -= 40960; ad = WOR2
            for tl in range(5):
                for hi in range(2):
                    out.append((f'ds_read_b64_tr_b16 {vr(dst + 4*tl + 2*hi, 2)}, v{ad} offset:{base + hi * 2560 + tl * 32}', f'WOR{st}'))
            return out
        rr = []
        for st in range(4): rr += wo_reads(st, WR + 20 * st)
        for i, x in enumerate(dm):
            p(*x)
            for y in rr[4 * i:4 * i + 4]: p(*y)
        self.get_nonce(NON, ZERO, sN, sCNT)
        p(f'v_mov_b32 v{NON}, s{sN}')
        p(f's_lshl_b32 s{t0}, s{sRB}, 7\ns_add_u32 s{t0}, s{t0}, {WS_FO}\ns_lshl_b32 s{t1}, s{sQ}, 2\ns_add_u32 s{t1}, s{t1}, s{t0}')
        p.wait(vm='OST', lg='all')
        self.ts(9)
        p('s_barrier')
        lsk = self.lab('noflag')
        p(f's_cmp_lg_u32 s{S_WAVE}, 0\ns_cbranch_scc1 {lsk}\ns_mov_b64 exec, 1')
        n0 = len(p.vm)
        p(f'buffer_store_dword v{NON}, v{ZERO}, {sr(SWS,4)}, s{t1} offen sc1')
        del p.vm[n0:]
        p(f's_mov_b64 exec, -1\n{lsk}:')
        for x in dma_wo(2): p(*x)
        for x in wo_reads(4, DB): p(*x)
        p(f's_lshl_b32 s{t2}, s{sRB}, 2\ns_add_u32 s{t2}, s{t2}, s{S_WAVE}\ns_mul_i32 s{t2}, s{t2}, 20480')
        l0, l1 = self.lab('pollo'), self.lab('pollo_ok')
        p(f's_mov_b32 s{sCNT}, 0\n{l0}:')
        p(f'buffer_load_dword v1, v{FLG}, {sr(SWS,4)}, s{t0} offen sc1', 'POLL')
        p('s_waitcnt vmcnt(0)')
        p(f'v_cmp_ne_u32 vcc, v1, v{NON}\ns_add_u32 s{sCNT}, s{sCNT}, 1\ns_cbranch_vccz {l1}')
        p(f's_cmp_gt_u32 s{sCNT}, {SPIN_CAP}\ns_cbranch_scc1 {l1}\ns_sleep 1\ns_branch {l0}\n{l1}:')
        for j in range(20):
            if j and j % 4 == 0: p(f's_add_u32 s{t2}, s{t2}, 4096')
            p(f'buffer_load_dwordx4 {vr(OF + 4*j, 4)}, v{L16}, {sr(SWS,4)}, s{t2} offen offset:{1024 * (j % 4)} sc1', f'O{j}')
        self.ts(10)
        SGR, SGG = 224, 228
        p(f's_lshl_b32 s{t0}, s{sRB}, 6\ns_and_b32 s{t1}, s{S_WAVE}, 1\ns_lshl_b32 s{t1}, s{t1}, 5\ns_add_u32 s{t0}, s{t0}, s{t1}')
        p(f's_lshr_b32 s{t1}, s{S_WAVE}, 1\ns_add_u32 s{t0}, s{t0}, s{t1}\ns_mul_i32 s{t0}, s{t0}, 2560\ns_mul_i32 s{t1}, s{sQ}, 160\ns_add_u32 s{t0}, s{t0}, s{t1}')
        p(f's_lshl_b32 s{t1}, s{S_WAVE}, 12\ns_add_u32 s{t1}, s{t1}, 20480\ns_movk_i32 s{t3}, 6554')
        ta, tb, tc = 231, 232, 233
        for i in range(3):
            p(f'v_add_u32 v{ta}, {64*i}, v0\nv_mul_u32_u24 v{tb}, s{t3}, v{ta}\nv_lshrrev_b32 v{tb}, 16, v{tb}')
            p(f'v_mul_u32_u24 v{tc}, 10, v{tb}\nv_sub_u32 v{ta}, v{ta}, v{tc}\nv_lshlrev_b32 v{ta}, 4, v{ta}')
            p(f'v_mul_u32_u24 v{tc}, 176, v{tb}\nv_add3_u32 v{SGR+i}, v{tc}, v{ta}, s{t1}')
            p(f'v_mul_u32_u24 v{tc}, 5120, v{tb}\nv_add3_u32 v{SGG+i}, v{tc}, v{ta}, s{t0}')
        p(f'v_lshrrev_b32 v{ta}, 5, v0\nv_lshl_or_b32 v{SGG+2}, v{ta}, 30, v{SGG+2}')
        for j in range(20):
            src = WR + 20 * j if j < 4 else DB + 20 * (j & 1)
            p.wait(vm=f'O{j}', lg=f'WOR{j}' if j >= 4 else None)
            if j == 7: p('s_barrier')
            nx = wo_reads(j + 1, DB + 20 * ((j + 1) & 1)) if 4 <= j < 19 else []
            for tl in range(5):
                ac = vr(AC2 + 4 * tl, 4)
                p(f'v_mfma_f32_16x16x32_bf16 {ac}, {vr(src + 4*tl, 4)}, {vr(OF + 4*j, 4)}, {ac if j else 0}')
                for x in nx[2 * tl:2 * tl + 2]: p(*x)
        self.ts(11)
        for tl in range(5):
            p(f'v_cvt_pk_bf16_f32 v{4+2*tl}, v{AC2+4*tl}, v{AC2+4*tl+1}\nv_cvt_pk_bf16_f32 v{5+2*tl}, v{AC2+4*tl+2}, v{AC2+4*tl+3}')
            p(f'ds_write_b64 v{SGW}, {vr(4+2*tl, 2)} offset:{32*tl}')
        p.wait(lg='all')
        for i in range(3): p(f'ds_read_b128 {vr(16+4*i, 4)}, v{SGR+i}', f'SG{i}')
        for i in range(3):
            p.wait(lg=f'SG{i}')
            p(f'buffer_store_dwordx4 {vr(16+4*i, 4)}, v{SGG+i}, {sr(SOUT,4)}, 0 offen')
        if self.ts_on:
            p('s_waitcnt vmcnt(0)')
            self.ts(12)
        self.ts_store()
        if self.calib:
            p(f's_add_u32 s100, s100, {self.calib}\nL_cal:\ns_memrealtime s[98:99]\ns_waitcnt lgkmcnt(0)\ns_sub_u32 s98, s98, s100\ns_cmp_lt_i32 s98, 0\ns_cbranch_scc1 L_cal')
        p('s_endpgm')

    def exw(self, tile, acc, CV, i, EW0, EW1, EWb):
        sg, t = tile
        r = CV + 2 * i if i < 18 else 158
        ac = acc(sg, t)
        self.p(f'v_cvt_pk_bf16_f32 v{r}, v{ac}, v{ac+1}\nv_cvt_pk_bf16_f32 v{r+1}, v{ac+2}, v{ac+3}')
        rowoff = [0, 0, 16, 40, 56][t] * 488
        if sg == 3: ad, off = EWb, rowoff
        elif t == 0: ad, off = EW0, 32 * sg
        else: ad, off = EW1, rowoff + 32 * sg
        self.p(f'ds_write_b64 v{ad}, {vr(r, 2)} offset:{off}')

    def branchB(self):
        p = self.p
        p.vm = []; p.lg = []
        sCLS, sS2, sTYP, sPAR, sN, sCNT = 44, 45, 46, 47, 48, 49
        sSEL = 50
        t0, t1, t2, t3 = 56, 57, 58, 59
        sE32 = 60
        sKAP, sDU = 62, 63
        a, b, c, d, e = 240, 241, 242, 243, 244
        n, g, ZERO, NON, L16 = 245, 246, 247, 248, 249
        FBUF, STG = 40960, 53248
        p('L_B:')
        p(f's_and_b32 s{t0}, s2, 7\ns_lshr_b32 s{t1}, s{S_ID}, 3\ns_and_b32 s{sCLS}, s{t1}, 3\ns_lshr_b32 s{t1}, s{t1}, 2')
        p(f's_lshl_b32 s{t0}, s{t0}, 3\ns_add_u32 s{sS2}, s{t0}, s{t1}\ns_lshr_b32 s{sTYP}, s{sCLS}, 1\ns_and_b32 s{sPAR}, s{sCLS}, 1')
        p(f'v_and_b32 v{n}, 15, v0\nv_lshrrev_b32 v{g}, 4, v0\nv_mov_b32 v{ZERO}, 0\nv_lshlrev_b32 v{L16}, 4, v0')
        XD = 250
        p(f's_lshl_b32 s{t0}, s{S_WAVE}, 2\ns_mov_b32 s{t1}, 81920')
        p(f'v_add_u32 v{a}, s{t0}, v{g}\nv_xor_b32 v{a}, v{a}, v{n}\nv_lshlrev_b32 v{a}, 4, v{a}\nv_mad_u32_u24 v{XD}, v{g}, s{t1}, v{a}')
        p(f's_lshl_b32 s{t0}, s{S_WAVE}, 8\ns_add_u32 s{t0}, s{t0}, s{sS2}\ns_mul_i32 s{t0}, s{t0}, 1280\ns_lshl_b32 s{t1}, s{S_WAVE}, 10')
        p('s_waitcnt lgkmcnt(0)')
        if self.ts_on: p(f'v_writelane_b32 v{V_TS}, s100, 0')
        self.srd(SX, 10, 2621440)
        for q in range(2):
            for bc in range(5):
                p(f's_add_u32 m0, s{t1}, {bc * 8192 + q * 4096}\ns_add_u32 s{t2}, s{t0}, {q * 1024 * 1280 + bc * 256}')
                p(f'buffer_load_dwordx4 v{XD}, {sr(SX,4)}, s{t2} offen lds', 'X')
        if self.codepf:
            lsk = self.lab('nopf')
            p(f's_cmp_lg_u32 s{S_WAVE}, 3\ns_cbranch_scc1 {lsk}')
            p(f's_getpc_b64 s[{t2}:{t3}]\nL_pc:')
            p(f's_lshr_b32 s{t0}, s{S_ID}, 3\ns_lshl_b32 s{t0}, s{t0}, 10\ns_sub_u32 s{t0}, s{t0}, L_pc-{KN}_kernel')
            p(f'v_and_b32 v{a}, 7, v0\nv_lshlrev_b32 v{a}, 7, v{a}\nv_add_u32 v{a}, s{t0}, v{a}\nv_min_i32 v{a}, L_exit-L_pc, v{a}')
            p(f'v_ashrrev_i32 v{b}, 31, v{a}\nv_mov_b32 v{c}, s{t3}\nv_add_co_u32 v{a}, vcc, s{t2}, v{a}\nv_addc_co_u32 v{b}, vcc, v{b}, v{c}, vcc')
            n0 = len(p.vm)
            p(f'global_load_dword v255, v[{a}:{b}], off')
            del p.vm[n0:]
            p(f'{lsk}:')
        self.srd(SWS, 16, WS_SIZE)
        self.srd(SOUT, 12, 5242880)
        self.srd(SDBG, 14, 256)
        p(f's_mov_b32 s{sE32}, -1\ns_mov_b32 s{sE32+1}, 0')
        p(f's_xor_b32 s{t2}, s{sPAR}, s{sTYP}')
        for i, s in enumerate((sPAR, sTYP, t2)):
            p(f's_lshl_b32 s{t0}, s{s}, 15\ns_or_b32 s{sSEL+2*i}, s{t0}, 0x3f80\ns_lshl_b32 s{sSEL+2*i+1}, s{sSEL+2*i}, 16')
        FA = 200
        p(f's_and_b32 s{t0}, s{S_WAVE}, 1\ns_lshl_b32 s{t0}, s{t0}, 12\ns_and_b32 s{t1}, s{S_WAVE}, 2')
        p(f'v_lshlrev_b32 v{d}, 8, v{n}\nv_add_u32 v{d}, s{t0}, v{d}')
        p(f'v_mul_u32_u24 v{e}, 5, v{g}\nv_add_u32 v{e}, s{t1}, v{e}')

        def chaddr(dst, sign, const):
            p(f'v_add_u32 v{a}, {const}, v{e}' if sign > 0 else f'v_sub_u32 v{a}, {const}, v{e}')
            p(f'v_min_u32 v{a}, 79, v{a}')
            p(f'v_xor_b32 v{b}, v{a}, v{n}\nv_and_b32 v{b}, 15, v{b}\nv_lshl_add_u32 v{b}, v{b}, 4, v{d}\nv_lshrrev_b32 v{a}, 4, v{a}\nv_lshl_add_u32 v{dst}, v{a}, 13, v{b}')
        for i in range(3):
            chaddr(FA + 4 * i, 1, i); chaddr(FA + 4 * i + 1, 1, 40 + i)
            chaddr(FA + 4 * i + 2, -1, 79 - i); chaddr(FA + 4 * i + 3, -1, 39 - i)
        chaddr(FA + 12, -1, 80); chaddr(FA + 13, -1, 40)
        ZA = 214
        p(f'v_xor_b32 v{a}, 4, v{n}\nv_lshlrev_b32 v{a}, 4, v{a}\nv_lshl_add_u32 v{ZA}, v{n}, 8, v{a}')
        p(f'v_xor_b32 v{a}, 12, v{n}\nv_lshlrev_b32 v{a}, 4, v{a}\nv_lshl_add_u32 v{ZA+1}, v{n}, 8, v{a}')
        FW = 216
        p(f's_and_b32 s{t0}, s{S_WAVE}, 1\ns_mul_i32 s{t0}, s{t0}, 5120\ns_lshl_b32 s{t1}, s{t1}, 10\ns_add_u32 s{t0}, s{t0}, s{t1}\ns_add_u32 s{t0}, s{t0}, {FBUF}')
        p(f'v_add_u32 v{FW}, s{t0}, v{L16}')
        MX = 4
        p(f's_lshl_b32 s{t0}, s{S_WAVE}, 5\ns_add_u32 s{t0}, s{t0}, s{sPAR}\ns_mul_i32 s{t1}, s{sTYP}, {fh(0.25)}')
        p(f'v_lshl_add_u32 v{a}, v{n}, 1, s{t0}\nv_cvt_f32_u32 v{e}, v{g}\nv_mul_f32 v{e}, {fh(40.0)}, v{e}')
        TT = 220
        for tl in range(3):
            base = MX + 22 * tl
            p(f'v_add_u32 v{b}, {128*tl}, v{a}\nv_cvt_f32_u32 v{b}, v{b}\nv_mul_f32 v{c}, {fh(1/640)}, v{b}\nv_fma_f32 v{d}, v{c}, v{e}, s{t1}')
            p(f'v_mul_f32 v{b}, {fh(0.25)}, v{b}\nv_add_f32 v{b}, s{t1}, v{b}\nv_cos_f32 v{b}, v{b}\nv_mov_b32 v{base+1}, 0\nv_cvt_pk_bf16_f32 v{base}, v{b}, 0')
            for k0 in range(0, 40, 8):
                for i in range(8):
                    p(f'v_fmamk_f32 v{TT+i}, v{c}, {fh(float(k0+i))}, v{d}')
                for i in range(8): p(f'v_cos_f32 v{TT+i}, v{TT+i}')
                for i in range(4): p(f'v_cvt_pk_bf16_f32 v{base + 2 + k0//2 + i}, v{TT+2*i}, v{TT+2*i+1}')
        AL = 72
        p(f's_cmp_eq_u32 s{sTYP}, 0\ns_cselect_b32 s{t0}, 0, {fh(0.25)}\ns_cselect_b32 s{t1}, {fh(-0.25)}, 0')
        p(f'v_cvt_f32_u32 v{e}, v{g}\nv_mul_f32 v{e}, 4.0, v{e}')
        for rt in range(2):
            p(f'v_lshrrev_b32 v{a}, 1, v{n}\nv_add_u32 v{a}, {8*rt}, v{a}\nv_and_b32 v{b}, 1, v{n}\nv_mov_b32 v{c}, s{t0}\nv_mov_b32 v{d}, s{t1}')
            p(f'v_cmp_eq_u32 vcc, 1, v{b}\ns_nop 1\nv_cndmask_b32 v{c}, v{c}, v{d}, vcc')
            if rt == 0:
                p(f'v_lshlrev_b32 v{b}, 4, v{b}\nv_cmp_eq_u32 vcc, 0, v{a}\ns_nop 1\nv_cndmask_b32 v{a}, v{a}, v{b}, vcc\nv_cndmask_b32 v{c}, v{c}, v{ZERO}, vcc')
            p(f'v_cvt_f32_u32 v{a}, v{a}\nv_mul_f32 v{a}, {fh(1/32)}, v{a}\nv_fma_f32 v{d}, v{a}, v{e}, v{c}')
            for i in range(8): p(f'v_fmamk_f32 v{TT+i}, v{a}, {fh(float(i if i < 4 else 12 + i))}, v{d}')
            for i in range(8): p(f'v_cos_f32 v{TT+i}, v{TT+i}')
            for i in range(4): p(f'v_cvt_pk_bf16_f32 v{AL + 4*rt + i}, v{TT+2*i}, v{TT+2*i+1}')
        SW_, SR_, SG_, XR_, XG_ = 217, 218, 219, 228, 229
        p(f's_lshl_b32 s{t0}, s{S_WAVE}, 5\ns_add_u32 s{t0}, s{t0}, {STG}')
        p(f'v_mul_u32_u24 v{a}, 400, v{n}\nv_lshl_add_u32 v{a}, v{g}, 3, v{a}\nv_add_u32 v{SW_}, s{t0}, v{a}')
        p(f's_lshl_b32 s{t0}, s{S_WAVE}, 3\nv_lshrrev_b32 v{a}, 3, v0\nv_add_u32 v{a}, s{t0}, v{a}\nv_and_b32 v{b}, 7, v0')
        p(f'v_mul_u32_u24 v{c}, 400, v{a}\nv_add_u32 v{c}, {STG}, v{c}\nv_lshl_add_u32 v{SR_}, v{b}, 4, v{c}')
        p(f'v_lshl_add_u32 v{c}, v{b}, 6, v{c}\nv_add_u32 v{XR_}, 64, v{c}')
        p(f'v_lshrrev_b32 v{c}, 1, v{a}\nv_mul_u32_u24 v{c}, 5, v{c}\nv_and_b32 v{a}, 1, v{a}\nv_lshlrev_b32 v{a}, 6, v{a}\nv_add_u32 v{a}, s{sS2}, v{a}')
        p(f'v_lshrrev_b32 v{d}, 2, v{b}\nv_add_u32 v{d}, v{d}, v{c}\nv_lshlrev_b32 v{d}, 15, v{d}\nv_lshl_add_u32 v{d}, v{a}, 8, v{d}')
        p(f's_lshl_b32 s{t0}, s{sCLS}, 6\ns_add_u32 s{t0}, s{t0}, {WS_G}\nv_and_b32 v{e}, 3, v{b}\nv_lshl_add_u32 v{d}, v{e}, 4, v{d}\nv_add_u32 v{SG_}, s{t0}, v{d}')
        SG2 = 230
        p(f'v_bfe_u32 v{e}, v0, 2, 1\nv_lshl_or_b32 v{SG2}, v{e}, 30, v{SG_}')
        p(f'v_add_u32 v{d}, v{b}, v{c}\nv_lshlrev_b32 v{d}, 11, v{d}\nv_lshl_add_u32 v{d}, v{a}, 4, v{d}')
        p(f's_lshl_b32 s{t0}, s{sTYP}, 3\ns_add_u32 s{t0}, s{t0}, {WS_EX}\nv_add_u32 v{d}, s{t0}, v{d}')
        p(f'v_cmp_lt_u32 vcc, 4, v{b}\nv_mov_b32 v{e}, 0x40000000\ns_nop 0\nv_cndmask_b32 v{XG_}, v{d}, v{e}, vcc\nv_cndmask_b32 v{XR_}, v{XR_}, v{SR_}, vcc')
        self.ts(1)
        p.wait(vm='all')
        p('s_barrier')
        p(f'buffer_load_dword v{NON}, v{ZERO}, {sr(SDBG,4)}, 0 offen sc1', 'NON')
        self.ts(2)
        RD = 80
        PV, ZV = 128, 130
        p(f'ds_read_b32 v{PV}, v{FA+12}\nds_read_b32 v{PV+1}, v{FA+13}', 'F0')
        for i in range(3):
            for k in range(4): p(f'ds_read_b128 {vr(RD + 16*i + 4*k, 4)}, v{FA + 4*i + k}', f'F{i}')
        p(f'ds_read_b32 v{ZV}, v{ZA} offset:8192\nds_read_b32 v{ZV+1}, v{ZA} offset:{8192+4096}', 'Z')
        p(f'ds_read_b32 v{ZV+2}, v{ZA+1} offset:24576\nds_read_b32 v{ZV+3}, v{ZA+1} offset:{24576+4096}', 'Z')
        p(f's_and_b32 s{t0}, s{S_WAVE}, 2\nv_or_b32 v{a}, s{t0}, v{g}\nv_cmp_eq_u32 vcc, 0, v{a}')
        FT, FO = 136, 144
        for i in range(3):
            p.wait(lg=f'F{i}')
            if i == 0: p(f'v_cndmask_b32 v{PV}, v{PV}, v{ZERO}, vcc\nv_cndmask_b32 v{PV+1}, v{PV+1}, v{ZERO}, vcc')
            A_, B_, C_, D_ = (RD + 16 * i + 4 * k for k in range(4))
            for k in range(8):
                p(f'v_lshlrev_b32 v{FT+k}, 16, v{A_ + k//2}' if k % 2 == 0 else f'v_and_b32 v{FT+k}, 0xffff0000, v{A_ + k//2}')
            for k in range(8): p(f'v_dot2c_f32_bf16 v{FT+k}, s{sSEL + k % 2}, v{B_ + k//2}')
            for w_, (src, prev) in enumerate(((C_, PV if i == 0 else C_ - 16), (D_, PV + 1 if i == 0 else D_ - 16))):
                for k in range(8):
                    if k == 0: p(f'v_dot2c_f32_bf16 v{FT}, s{sSEL + 2 + 2*w_}, v{prev}')
                    else:
                        el = 8 - k
                        p(f'v_dot2c_f32_bf16 v{FT+k}, s{sSEL + 2 + 2*w_ + el % 2}, v{src + el//2}')
            for k in range(4): p(f'v_cvt_pk_bf16_f32 v{FO + 4*i + k}, v{FT+2*k}, v{FT+2*k+1}')
            p(f'ds_write_b128 v{FW}, {vr(FO + 4*i, 4)} offset:{1024*i}')
        ZF = 156
        p.wait(lg='Z')
        p(f'v_cmp_eq_u32 vcc, 0, v{g}')
        for mt in range(2):
            p(f'v_lshlrev_b32 v{a}, 16, v{ZV+mt}\nv_dot2c_f32_bf16 v{a}, s{sSEL}, v{ZV+2+mt}\nv_mov_b32 v{ZF+2*mt+1}, 0')
            p(f'v_cndmask_b32 v{a}, v{ZERO}, v{a}, vcc\nv_cvt_pk_bf16_f32 v{ZF+2*mt}, v{a}, 0')
        p.wait(lg='all')
        p('s_barrier')
        self.ts(3)
        XF, G1 = 80, 160
        for pp in range(5):
            for mt in range(2): p(f'ds_read_b128 {vr(XF + 20*mt + 4*pp, 4)}, v{L16} offset:{FBUF + (5*mt + pp) * 1024}', f'XF{pp}')
        for tl in range(3):
            for mt in range(2):
                p(f'v_mfma_f32_16x16x16_bf16 {vr(G1 + 8*tl + 4*mt, 4)}, {vr(ZF + 2*mt, 2)}, {vr(MX + 22*tl, 2)}, 0')
        for pp in range(5):
            p.wait(lg=f'XF{pp}')
            for tl in range(3):
                for mt in range(2):
                    ac = vr(G1 + 8 * tl + 4 * mt, 4)
                    p(f'v_mfma_f32_16x16x32_bf16 {ac}, {vr(XF + 20*mt + 4*pp, 4)}, {vr(MX + 22*tl + 2 + 4*pp, 4)}, {ac}')
        F2, G2 = 124, 80
        for tl in range(3):
            for k in range(4): p(f'v_cvt_pk_bf16_f32 v{F2 + 4*tl + k}, v{G1 + 8*tl + 2*k}, v{G1 + 8*tl + 2*k + 1}')
        for tl in range(3):
            for rt in range(2):
                p(f'v_mfma_f32_16x16x32_bf16 {vr(G2 + 8*tl + 4*rt, 4)}, {vr(F2 + 4*tl, 4)}, {vr(AL + 4*rt, 4)}, 0')
        for tl in range(3):
            for rt in range(2):
                s_ = G2 + 8 * tl + 4 * rt; r = 136 + 4 * tl + 2 * rt
                p(f'v_cvt_pk_bf16_f32 v{r}, v{s_}, v{s_+1}\nv_cvt_pk_bf16_f32 v{r+1}, v{s_+2}, v{s_+3}')
                p(f'ds_write_b64 v{SW_}, {vr(r, 2)} offset:{rt * 6400 + tl * 128}')
        p.wait(lg='all')
        p('s_barrier')
        for i in range(3): p(f'ds_read_b128 {vr(80 + 4*i, 4)}, v{SR_} offset:{128*i}', f'S{i}')
        p(f'ds_read_b64 v[92:93], v{XR_}', 'S3')
        for i in range(3):
            p.wait(lg=f'S{i}')
            p(f's_mov_b32 s{t0}, {i * 65536}')
            p(f'buffer_store_dwordx4 {vr(80 + 4*i, 4)}, v{SG_ if i < 2 else SG2}, {sr(SWS,4)}, s{t0} offen sc1')
        lsk = self.lab('noex')
        p.wait(lg='all')
        p(f's_cmp_lg_u32 s{sPAR}, 0\ns_cbranch_scc1 {lsk}')
        p(f'buffer_store_dwordx2 v[92:93], v{XG_}, {sr(SWS,4)}, 0 offen sc1')
        p(f'{lsk}:')
        self.ts(4)
        p.wait(vm='all')
        self.get_nonce(NON, ZERO, sN, sCNT)
        p(f'v_mov_b32 v{NON}, s{sN}')
        p('s_barrier')
        lsk = self.lab('noflagb')
        p(f's_cmp_lg_u32 s{S_WAVE}, 0\ns_cbranch_scc1 {lsk}')
        p(f's_lshl_b32 s{t0}, s{sS2}, 7\ns_lshl_b32 s{t1}, s{sCLS}, 2\ns_add_u32 s{t0}, s{t0}, s{t1}\ns_add_u32 s{t0}, s{t0}, {WS_FG}\ns_mov_b64 exec, 1')
        p(f'buffer_store_dword v{NON}, v{ZERO}, {sr(SWS,4)}, s{t0} offen sc1')
        p(f's_mov_b64 exec, -1\n{lsk}:')
        self.ts(5)
        lb2 = self.lab('b2')
        p(f's_cmp_lt_u32 s{S_ID}, 80\ns_cbranch_scc1 {lb2}')
        self.ts_store()
        p(f's_endpgm\n{lb2}:')

        p.vm = []; p.lg = []
        EXL, ST2 = 32768, 40960
        p(f's_and_b32 s{sKAP}, s{S_ID}, 15\ns_lshr_b32 s{sDU}, s{S_ID}, 4')
        sT = 64
        p(f's_lshl_b32 s{t0}, s{S_WAVE}, 9\ns_add_u32 s{t0}, s{t0}, s{sKAP}\ns_and_b32 s{t1}, s{S_WAVE}, 1\ns_lshl_b32 s{t1}, s{t1}, 9')
        p(f's_lshr_b32 s{t2}, s{S_WAVE}, 1\ns_lshl_b32 s{t2}, s{t2}, 4\ns_add_u32 s{t1}, s{t1}, s{t2}\ns_cmp_eq_u32 s{sKAP}, 0\ns_cselect_b32 s{sT}, s{t1}, s{t0}')
        FC, FS, FX = 4, 20, 36
        p(f'v_lshl_add_u32 v{a}, v{n}, 5, s{sT}\nv_cvt_f32_u32 v{a}, v{a}\nv_mul_f32 v{a}, {fh(1/2048)}, v{a}')
        p(f'v_cvt_f32_u32 v{e}, v{g}\nv_mul_f32 v{e}, 4.0, v{e}\nv_mul_f32 v{c}, v{a}, v{e}\nv_add_f32 v{d}, {fh(0.25)}, v{c}')
        for h, bs in enumerate((c, d)):
            for jj in range(2):
                for i in range(8): p(f'v_fmamk_f32 v{TT+i}, v{a}, {fh(float(32*jj + (i if i < 4 else 12 + i)))}, v{bs}')
                for i in range(8): p(f'v_cos_f32 v{TT+i}, v{TT+i}')
                for i in range(4): p(f'v_cvt_pk_bf16_f32 v{FC + 8*h + 4*jj + i}, v{TT+2*i}, v{TT+2*i+1}')
        lk0, lk1, lkd = self.lab('k0'), self.lab('k0hi'), self.lab('kd')
        for i in range(4): p(f'v_mov_b32 v{FX+i}, 0')
        p(f's_cmp_eq_u32 s{sKAP}, 0\ns_cbranch_scc1 {lk0}')
        for i in range(16): p(f'v_mov_b32 v{FS+i}, v{FC+i}')
        p(f's_branch {lkd}\n{lk0}:\ns_cmp_ge_u32 s{S_WAVE}, 2\ns_cbranch_scc1 {lk1}')
        for i in range(8): p(f'v_mov_b32 v{FS+i}, v{FC+8+i}\nv_mov_b32 v{FC+8+i}, 0\nv_mov_b32 v{FS+8+i}, 0')
        p(f'v_or_b32 v{a}, s{S_WAVE}, v{n}\nv_cmp_eq_u32 vcc, 0, v{a}\nv_mov_b32 v{b}, 0x3f80\nv_mov_b32 v{c}, 1.0')
        for i in range(8): p(f'v_cndmask_b32 v{FC+i}, v{FC+i}, v{b}, vcc')
        for i in range(4): p(f'v_cndmask_b32 v{FX+i}, v{FX+i}, v{c}, vcc')
        p(f's_branch {lkd}\n{lk1}:')
        for i in range(8): p(f'v_mov_b32 v{FS+8+i}, v{FC+8+i}\nv_mov_b32 v{FC+8+i}, v{FC+i}\nv_mov_b32 v{FC+i}, 0\nv_mov_b32 v{FS+i}, 0')
        p(f'{lkd}:')
        GD, GA, XA, S2W, S2X, S2R, S2M, RA = 200, 201, 209, 210, 211, 212, 213, 214
        p(f's_and_b32 s{t0}, s{S_WAVE}, 1\ns_lshl_b32 s{t0}, s{t0}, 2\nv_add_u32 v{a}, s{t0}, v{g}\nv_lshlrev_b32 v{a}, 1, v{a}\nv_xor_b32 v{a}, v{a}, v{n}')
        p(f'v_lshlrev_b32 v{a}, 4, v{a}\nv_lshl_add_u32 v{GD}, v{g}, 8, v{a}')
        p(f'v_lshrrev_b32 v{a}, 2, v0\nv_and_b32 v{b}, 3, v0\nv_lshlrev_b32 v{b}, 3, v{b}\nv_lshl_add_u32 v{b}, v{a}, 8, v{b}\nv_and_b32 v{c}, 7, v{a}')
        for u in range(8): p(f'v_xor_b32 v{d}, {u}, v{c}\nv_lshl_add_u32 v{GA+u}, v{d}, 5, v{b}')
        p(f'v_lshlrev_b32 v{a}, 4, v{a}\nv_add_u32 v{XA}, {EXL}, v{a}')
        p(f's_mul_i32 s{t0}, s{S_WAVE}, 4608\ns_add_u32 s{t0}, s{t0}, {ST2}')
        p(f'v_mul_u32_u24 v{a}, 144, v{n}\nv_add_u32 v{S2X}, s{t0}, v{a}\nv_lshl_add_u32 v{S2W}, v{g}, 4, v{S2X}')
        p(f'v_lshrrev_b32 v{a}, 3, v0\nv_and_b32 v{b}, 7, v0\nv_mul_u32_u24 v{c}, 144, v{a}\nv_add_u32 v{c}, s{t0}, v{c}\nv_lshl_add_u32 v{S2R}, v{b}, 4, v{c}')
        p(f'v_xor_b32 v{d}, 7, v{b}\nv_lshl_add_u32 v{S2M}, v{d}, 4, v{c}')
        p(f's_lshl_b32 s{t0}, s{sDU}, 7\ns_add_u32 s{t1}, s{t0}, 1280\ns_sub_u32 s{t2}, {1280 + 1152}, s{t0}\ns_movk_i32 s{t3}, 2560')
        p(f'v_lshlrev_b32 v{b}, 4, v{b}\nv_lshl_add_u32 v{a}, v{a}, 5, s{sT}')
        for hh in range(2):
            if hh: p(f'v_add_u32 v{a}, 256, v{a}')
            p(f'v_sub_u32 v{c}, 2048, v{a}\nv_and_b32 v{c}, 2047, v{c}')
            p(f'v_mad_u32_u24 v{d}, v{a}, s{t3}, v{b}\nv_mad_u32_u24 v{e}, v{c}, s{t3}, v{b}')
            r = RA + 4 * hh
            if hh == 0:
                p(f'v_cmp_eq_u32 vcc, 0, v{a}\nv_add_u32 v{c}, {1024*2560}, v{d}\nv_add_u32 v{r+3}, s{t2}, v{d}\nv_add_u32 v{r+1}, s{t1}, v{e}')
                p(f'v_cndmask_b32 v{d}, v{d}, v{c}, vcc\nv_cndmask_b32 v{e}, v{e}, v{c}, vcc\nv_add_u32 v{r}, s{t1}, v{d}\nv_add_u32 v{r+2}, s{t2}, v{e}')
            else:
                p(f'v_add_u32 v{r}, s{t1}, v{d}\nv_add_u32 v{r+1}, s{t1}, v{e}\nv_add_u32 v{r+2}, s{t2}, v{e}\nv_add_u32 v{r+3}, s{t2}, v{d}')
        p(f's_mul_i32 s{t0}, s{sKAP}, 5\ns_add_u32 s{t0}, s{t0}, s{sDU}\ns_lshl_b32 s{t1}, s{t0}, 11\ns_lshl_b32 s{t0}, s{t0}, 15')
        p(f's_lshr_b32 s{t2}, s{S_WAVE}, 1\ns_lshl_b32 s{t2}, s{t2}, 14\ns_and_b32 s{t3}, s{S_WAVE}, 1\ns_lshl_b32 s{t3}, s{t3}, 10\ns_add_u32 s{t2}, s{t2}, s{t3}')
        p(f's_add_u32 s{t0}, s{t0}, s{t2}\ns_add_u32 s{t0}, s{t0}, {WS_G}')
        p(f's_lshl_b32 s{t3}, s{S_WAVE}, 9\ns_add_u32 s{t1}, s{t1}, s{t3}\ns_add_u32 s{t1}, s{t1}, {WS_EX}\ns_add_u32 s{t3}, s{t3}, {EXL}')
        p(f'v_lshlrev_b32 v{a}, 7, v0\ns_mov_b32 s65, {WS_FG}')
        self.ts(6)
        l0, l1 = self.lab('pollg'), self.lab('pollg_ok')
        p(f's_mov_b32 s{sCNT}, 0\n{l0}:')
        p(f'buffer_load_dwordx4 v[40:43], v{a}, {sr(SWS,4)}, s65 offen sc1')
        p('s_waitcnt vmcnt(0)')
        p(f'v_xor_b32 v40, v40, v{NON}\nv_xor_b32 v41, v41, v{NON}\nv_xor_b32 v42, v42, v{NON}\nv_xor_b32 v43, v43, v{NON}')
        p(f'v_or3_b32 v40, v40, v41, v42\nv_or_b32 v40, v40, v43\nv_cmp_ne_u32 vcc, 0, v40\ns_add_u32 s{sCNT}, s{sCNT}, 1\ns_cbranch_vccz {l1}')
        p(f's_cmp_gt_u32 s{sCNT}, {SPIN_CAP}\ns_cbranch_scc1 {l1}\ns_sleep 4\ns_branch {l0}\n{l1}:')
        self.ts(7)
        p(f's_mov_b32 m0, s{t3}\ns_mov_b64 exec, {sr(sE32,2)}')
        p(f'buffer_load_dwordx4 v{L16}, {sr(SWS,4)}, s{t1} offen sc1 lds')
        p('s_mov_b64 exec, -1')
        for i in range(8):
            p(f's_add_u32 m0, s{t2}, {2048*i}')
            if i: p(f's_add_u32 s{t0}, s{t0}, 2048')
            p(f'buffer_load_dwordx4 v{GD}, {sr(SWS,4)}, s{t0} offen sc1 lds')
        p.wait(vm='all')
        p('s_barrier')
        self.ts(8)
        AC, GB = 40, [80, 120]

        def greads(j):
            out = []
            for u in range(10):
                for hi in range(2):
                    dst = vr(GB[j & 1] + 4 * u + 2 * hi, 2)
                    if u < 8: out.append((f'ds_read_b64_tr_b16 {dst}, v{GA+u} offset:{(32*j + 16*hi) * 256}', f'G{j}_{u}'))
                    else: out.append((f'ds_read_b64_tr_b16 {dst}, v{XA} offset:{(32*j + 16*hi) * 16 + 8 * (u - 8)}', f'G{j}_{u}'))
            return out
        for x in greads(0): p(*x)
        for j in range(4):
            nx = greads(j + 1) if j < 3 else []
            for u in range(10):
                p.wait(lg=f'G{j}_{u}')
                is_sin = (4 <= u < 8) or u == 9
                F = (FS if is_sin else FC) + 4 * j
                ac = vr(AC + 4 * u, 4)
                first = j == 0 and not is_sin
                p(f'v_mfma_f32_16x16x32_bf16 {ac}, {vr(GB[j & 1] + 4*u, 4)}, {vr(F, 4)}, {0 if first else ac}')
                if j < 2 and not is_sin:
                    a2 = vr(AC + 4 * (u + 4 if u < 4 else 9), 4)
                    p(f'v_mfma_f32_16x16x32_bf16 {a2}, {vr(GB[j & 1] + 4*u, 4)}, {vr(FX, 4)}, {0 if j == 0 else a2}')
                for x in nx[2 * u:2 * u + 2]: p(*x)
        U = 80
        for ud in range(2):
            Pe, Po, Qe, Qo = (AC + 4 * (2 * cl + ud) for cl in range(4))
            r = U + 24 * ud
            for k in range(2):
                p(f'v_pk_add_f32 {vr(r+2*k,2)}, {vr(Pe+2*k,2)}, {vr(Qe+2*k,2)} neg_lo:[0,1] neg_hi:[0,1]')
                p(f'v_pk_add_f32 {vr(r+4+2*k,2)}, {vr(Po+2*k,2)}, {vr(Qo+2*k,2)} neg_lo:[0,1] neg_hi:[0,1]')
                p(f'v_pk_add_f32 {vr(r+8+2*k,2)}, {vr(Pe+2*k,2)}, {vr(Qe+2*k,2)}')
                p(f'v_pk_add_f32 {vr(r+12+2*k,2)}, {vr(Po+2*k,2)}, {vr(Qo+2*k,2)}')
            for k in range(4): p(f'v_cvt_pk_bf16_f32 v{r+16+k}, v{r+k}, v{r+4+k}')
            p(f'ds_write_b128 v{S2W}, {vr(r+16,4)} offset:{64*ud}')
            for k in range(4): p(f'v_cvt_pk_bf16_f32 v{r+20+k}, v{r+8+k}, v{r+12+k}')
            p(f'ds_write_b128 v{S2W}, {vr(r+20,4)} offset:{2304 + 64*ud}')
        p(f'v_sub_f32 v130, v{AC+32}, v{AC+36}\nv_add_f32 v131, v{AC+32}, v{AC+36}\nv_cvt_pk_bf16_f32 v130, v130, v130\nv_cvt_pk_bf16_f32 v131, v131, v131')
        p(f'ds_write_b32 v{S2X}, v130 offset:128\nds_write_b32 v{S2X}, v131 offset:{2304+128}')
        p(f's_mov_b32 s{t0}, 0xffff')
        p.wait(lg='all')
        R = 132
        k = 0
        for hh in range(2):
            for uu in range(2):
                off = uu * 2304 + hh * 8 * 144
                p(f'ds_read_b128 {vr(R + 10*k, 4)}, v{S2R} offset:{off}', f'f{k}')
                p(f'ds_read_b128 {vr(R + 10*k + 4, 4)}, v{S2M} offset:{off}', f'm{k}')
                p(f'ds_read_b32 v{R + 10*k + 8}, v{S2M} offset:{off + 16}', f'm{k}')
                k += 1
        k = 0
        for hh in range(2):
            for uu in range(2):
                p.wait(lg=f'f{k}')
                p(f'buffer_store_dwordx4 {vr(R + 10*k, 4)}, v{RA + 4*hh + uu}, {sr(SOUT,4)}, 0 offen')
                p.wait(lg=f'm{k}')
                D = R + 10 * k + 4; o = 176 + 4 * k
                p(f'v_bfi_b32 v{o}, s{t0}, v{D+4}, v{D+3}\nv_bfi_b32 v{o+1}, s{t0}, v{D+3}, v{D+2}\nv_bfi_b32 v{o+2}, s{t0}, v{D+2}, v{D+1}\nv_bfi_b32 v{o+3}, s{t0}, v{D+1}, v{D}')
                p(f'buffer_store_dwordx4 {vr(o, 4)}, v{RA + 4*hh + 2 + uu}, {sr(SOUT,4)}, 0 offen')
                k += 1
        if self.ts_on:
            self.ts(9)
            p('s_waitcnt vmcnt(0)')
            self.ts(10)
        self.ts_store()
        p('L_exit:\ns_endpgm')

    def build(self):
        self.entry(); self.branchA(); self.branchB()
        hdr = open('cdna_kernels/' + KN + '.s.ref').read().split('; Override launch')[0]
        hdr += '; One launch: workgroups 0..255 run branch A (QKV GEMM -> windowed attention -> hand-off -> output projection),\n'
        hdr += '; workgroups 256..511 run branch B (2-D DFT real part: folded hidden DFT + radix-32 stage -> hand-off -> radix-64 stage).\n'
        hdr += '; @launch grid=(512,1,1) block=(256,1,1) lds=81920\n'
        hdr += f'.amdgcn_target "amdgcn-amd-amdhsa--gfx950"\n.text\n.globl {KN}_kernel\n.p2align 8\n.type {KN}_kernel,@function\n'
        tail = f'''.section .rodata,"a"
.p2align 6
.amdhsa_kernel {KN}_kernel
  .amdhsa_next_free_vgpr 256
  .amdhsa_next_free_sgpr 102
  .amdhsa_accum_offset 256
  .amdhsa_group_segment_fixed_size 0
  .amdhsa_kernarg_size 88
  .amdhsa_user_sgpr_count 2
  .amdhsa_user_sgpr_kernarg_segment_ptr 1
  .amdhsa_system_sgpr_workgroup_id_x 1
  .amdhsa_float_denorm_mode_32 3
.end_amdhsa_kernel
'''
        return hdr + self.p.text() + tail


if __name__ == '__main__':
    import argparse
    ap = argparse.ArgumentParser()
    ap.add_argument('-o', default='cdna_kernels/' + KN + '.s')
    ap.add_argument('--ts', action='store_true')
    ap.add_argument('--rot', default='1,3')
    ap.add_argument('--nomimic', action='store_true')
    ap.add_argument('--prio', type=int, default=0)
    ap.add_argument('--nocodepf', action='store_true')
    ap.add_argument('--calib', type=int, default=0)
    a = ap.parse_args()
    g = Gen(ts=a.ts, rot=tuple(int(x) for x in a.rot.split(',')), mimic=not a.nomimic, prio=a.prio, codepf=not a.nocodepf, calib=a.calib)
    s = g.build()
    open(a.o, 'w').write(s)
    print('written', a.o, 'instructions', sum(1 for i in g.p.ins if i.kind != 'none'), 'auto nops', g.p.nops)
```

```python
import sys, math
from asmlib import *

KN = 'concat_heads__sliding_local_dilated__spectral_fnet__prompt'
WS_O, WS_G, WS_EX, WS_FO, WS_FG, WS_TS, WS_SIZE = 0, 0x300000, 0x600000, 0x680000, 0x690000, 0x700000, 0x800000
SPIN_CAP = 20000

SX, SW, SWO, SWS, SOUT, SDBG = 20, 24, 28, 32, 36, 40
S_WAVE, S_ID = 18, 19
V_TS = 3


class Gen:
    def __init__(self, ts=False, rot=(1, 3), mimic=True, prio=0, codepf=True, calib=0, exp='', omod=''):
        self.omod = (' ' + omod.replace('+', ' ')) if omod else ''
        self.calib = calib
        self.exp = exp.split(',')
        self.p = Prog()
        self.ts_on = ts
        self.rot = rot
        self.mimic = mimic
        self.prio = prio
        self.codepf = codepf
        self.nlab = 0

    def lab(self, s):
        self.nlab += 1
        return f'L_{s}_{self.nlab}'

    def ts(self, k):
        if self.ts_on:
            self.p(f's_memrealtime s[100:101]\ns_waitcnt lgkmcnt(0)\nv_writelane_b32 v{V_TS}, s100, {k}')

    def tc(self, k):
        if self.ts_on:
            self.p(f's_memtime s[100:101]\ns_waitcnt lgkmcnt(0)\nv_writelane_b32 v{V_TS}, s100, {k}')

    def ts_store(self):
        if self.ts_on:
            p = self.p
            p(f's_lshl_b32 s100, s2, 2\ns_add_u32 s100, s100, s{S_WAVE}\ns_lshl_b32 s100, s100, 6\ns_add_u32 s100, s100, {WS_TS}')
            p('v_mbcnt_lo_u32_b32 v1, -1, 0\nv_mbcnt_hi_u32_b32 v1, -1, v1\nv_lshlrev_b32 v1, 2, v1')
            p('s_mov_b64 exec, 0xffff')
            p(f'buffer_store_dword v{V_TS}, v1, {sr(SWS,4)}, s100 offen')
            p('s_mov_b64 exec, -1')

    def srd(self, d, base, nbytes):
        self.p(f's_mov_b32 s{d}, s{base}\ns_and_b32 s{d+1}, s{base+1}, 0xffff\ns_mov_b32 s{d+2}, {nbytes}\ns_mov_b32 s{d+3}, 0x20000')

    def get_nonce(self, vn, vz, sn, scnt):
        p = self.p
        l0, l1 = self.lab('nonce'), self.lab('nonce_ok')
        p(f's_mov_b32 s{scnt}, 0')
        p(f'{l0}:')
        p(f'v_readfirstlane_b32 s{sn}, v{vn}')
        p(f's_cmp_lg_u32 s{sn}, 0\ns_cbranch_scc1 {l1}')
        p(f's_add_u32 s{scnt}, s{scnt}, 1\ns_cmp_gt_u32 s{scnt}, {SPIN_CAP}\ns_cbranch_scc1 {l1}')
        p('s_sleep 2')
        n0 = len(p.vm)
        p(f'buffer_load_dword v{vn}, v{vz}, {sr(SDBG,4)}, 0 offen sc1')
        p('s_waitcnt vmcnt(0)')
        del p.vm[n0:]
        p(f's_branch {l0}')
        p(f'{l1}:')

    def entry(self):
        p = self.p
        p(f'{KN}_kernel:')
        p('s_cmp_ge_u32 s2, 512\ns_cbranch_scc1 L_exit')
        p('s_load_dwordx4 s[4:7], s[0:1], 0\ns_load_dwordx4 s[8:11], s[0:1], 16\ns_load_dwordx4 s[12:15], s[0:1], 64\ns_load_dwordx2 s[16:17], s[0:1], 80')
        if self.ts_on:
            p(f'v_mov_b32 v{V_TS}, 0\ns_memrealtime s[100:101]')
        if self.calib: p('s_memrealtime s[100:101]')
        p('v_lshrrev_b32 v1, 6, v0\nv_and_b32 v0, 63, v0')
        p(f'v_readfirstlane_b32 s{S_WAVE}, v1')
        p(f's_and_b32 s{S_ID}, s2, 255')
        p('s_cmp_ge_u32 s2, 256\ns_cbranch_scc1 ' + ('L_exit' if 'aonly' in self.exp else 'L_B'))

    def branchA(self):
        p = self.p
        MASK0 = 44
        sQ, sRB, sK, sMW, sMX, sN, sCNT = 66, 67, 68, 70, 71, 86, 87
        sE48, sE32 = 72, 74
        t0, t1, t2, t3 = 76, 77, 78, 79
        sC0 = 80
        sP = 88
        sOW, sMO = 98, 99
        ACC = 4
        FB = [80, 116]
        WD, XD, XR, WRa, WRb = 224, 228, 231, 233, 234
        EW0, EW1, EWb = 235, 236, 237
        OD = 238
        QK, VA, VB, OS1, OS2 = 243, 244, 245, 246, 247
        WOR, WOR2, L16, ZERO, NON, FLG = 248, 249, 250, 251, 252, 253
        SGW = 254
        SGR, SGG = 152, 155
        a, b, c, d, e = 160, 161, 162, 163, 164
        XB = 61440
        EXB = 40960

        def acc(sg, t):
            return ACC + 4 * (5 * sg + t) if sg < 3 else ACC + 60 + 4 * (t - 1)

        p(f's_and_b32 s{t0}, s2, 7\ns_lshr_b32 s{t1}, s2, 3')
        p(f's_and_b32 s{t2}, s{t0}, 1\ns_lshl_b32 s{t2}, s{t2}, 2\ns_and_b32 s{t3}, s{t1}, 3\ns_add_u32 s{sQ}, s{t2}, s{t3}')
        p(f's_lshr_b32 s{t0}, s{t0}, 1\ns_lshl_b32 s{t0}, s{t0}, 3\ns_lshr_b32 s{t1}, s{t1}, 2\ns_add_u32 s{sRB}, s{t0}, s{t1}')
        p(f's_mul_i32 s{t1}, s{t1}, {self.rot[0]}\ns_mul_i32 s{t3}, s{t3}, {self.rot[1]}\ns_add_u32 s{t1}, s{t1}, s{t3}')
        p(f's_mul_i32 s{t2}, s{t1}, 26\ns_lshr_b32 s{t2}, s{t2}, 8\ns_mul_i32 s{t2}, s{t2}, 10\ns_sub_u32 s{t1}, s{t1}, s{t2}')
        p(f's_lshl_b32 s{sP}, s{t1}, 7')
        p(f's_mul_i32 s{sMW}, s{S_WAVE}, 3840\ns_mul_i32 s{sMX}, s{S_WAVE}, 2560\ns_add_u32 s{sMX}, s{sMX}, {XB}')
        p(f's_mov_b32 s{sE48}, -1\ns_mov_b32 s{sE48+1}, 0xffff\ns_mov_b32 s{sE32}, -1\ns_mov_b32 s{sE32+1}, 0')
        p(f's_mul_i32 s{t0}, s{S_WAVE}, 20\ns_lshl_b32 s{t2}, s{sRB}, 6\ns_sub_u32 s{t2}, s{t2}, 16\ns_movk_i32 s{t3}, 1280')
        p(f'v_lshrrev_b32 v{a}, 3, v0\nv_add_u32 v{a}, s{t0}, v{a}\nv_and_b32 v{b}, 7, v0')
        for i in range(3):
            if i: p(f'v_add_u32 v{a}, 8, v{a}')
            p(f'v_lshlrev_b32 v{c}, 1, v{a}')
            p(f'v_cmp_lt_u32 vcc, 7, v{a}\nv_subrev_u32 v{d}, 15, v{c}\ns_nop 0\nv_cndmask_b32 v{e}, v{c}, v{d}, vcc')
            p(f'v_cmp_lt_u32 vcc, 15, v{a}\nv_subrev_u32 v{d}, 16, v{c}\ns_nop 0\nv_cndmask_b32 v{e}, v{e}, v{d}, vcc')
            p(f'v_cmp_lt_u32 vcc, 47, v{a}\nv_subrev_u32 v{d}, 79, v{c}\ns_nop 0\nv_cndmask_b32 v{e}, v{e}, v{d}, vcc')
            p(f'v_add_u32 v{e}, s{t2}, v{e}\nv_mul_lo_u32 v{e}, v{e}, s{t3}')
            p(f'v_bfe_u32 v{c}, v{a}, 1, 3\nv_xor_b32 v{c}, v{c}, v{b}\nv_lshl_add_u32 v{XD+i}, v{c}, 4, v{e}')
        p('s_waitcnt lgkmcnt(0)')
        if self.ts_on: p(f'v_writelane_b32 v{V_TS}, s100, 0')
        self.srd(SX, 4, 2621440)
        self.srd(SWS, 16, WS_SIZE)
        self.srd(SW, 6, 2457600)
        if self.prio: p(f's_setprio {self.prio}')
        lne = self.lab('noel')
        p(f's_or_b32 s{t0}, s2, s{S_WAVE}\ns_cmp_lg_u32 s{t0}, 0\ns_cbranch_scc1 {lne}')
        p(f'v_lshrrev_b32 v{c}, 1, v0\nv_lshlrev_b32 v{c}, 7, v{c}\nv_and_b32 v{d}, 1, v0\nv_lshl_add_u32 v{c}, v{d}, 4, v{c}\nv_lshlrev_b32 v{d}, 7, v0')
        p(f's_mov_b32 s{t0}, {WS_FO}\ns_mov_b32 s{t1}, {WS_FG}')
        n0 = len(p.vm)
        p(f'buffer_load_dwordx4 v[168:171], v{c}, {sr(SWS,4)}, s{t0} offen sc1')
        p(f'buffer_load_dwordx4 v[172:175], v{d}, {sr(SWS,4)}, s{t1} offen sc1')
        del p.vm[n0:]
        p(f'{lne}:')

        def dma_x(P):
            out = []
            for i in range(3):
                s = f's_add_u32 m0, s{sMX}, {(P & 1) * 10240 + 1024 * i}\n'
                if i == 2: s += f's_mov_b64 exec, {sr(sE32,2)}\n'
                s += f'buffer_load_dwordx4 v{XD+i}, {sr(SX,4)}, s{sP+P} offen lds'
                if i == 2: s += '\ns_mov_b64 exec, -1'
                out.append((s, f'X{P}'))
            return out

        def dma_w(s_, only=None):
            out = []
            for i in range(4):
                s = ''
                if i == 0:
                    s += f's_mul_i32 s{sK}, s{sP + (s_ >> 1)}, 1920\n'
                    if s_ & 1: s += f's_add_u32 s{sK}, s{sK}, 122880\n'
                s += f's_add_u32 m0, s{sMW}, {(s_ & 3) * 15360 + 1024 * i}\n'
                if i == 3: s += f's_mov_b64 exec, {sr(sE48,2)}\n'
                s += f'buffer_load_dwordx4 v{WD+i}, {sr(SW,4)}, s{sK} offen lds'
                if i == 3: s += '\ns_mov_b64 exec, -1'
                out.append((s, f'W{s_}'))
            return out

        def wo_base(st):
            return [0, 20480, 0, 40960, 61440][st >> 2] + (st & 3) * 5120

        def dma_wo(g):
            out = []
            for i in range(5):
                s = ''
                if i == 0: s += f's_add_u32 s{sK}, s{sOW}, {g * 4 * 40960}\n'
                s += f's_add_u32 m0, s{sMO}, {wo_base(4 * g) + 1024 * i}\n'
                s += f'buffer_load_dwordx4 v{OD+i}, {sr(SWO,4)}, s{sK} offen lds'
                out.append((s, f'WO{g}'))
            return out

        for s, tg in dma_x(0): p(s, tg)
        p(f's_mul_i32 s{t0}, s{S_WAVE}, 240\ns_movk_i32 s{t1}, 2185\ns_mul_i32 s{t2}, s{sQ}, 160\ns_movk_i32 s{t3}, 3840')
        w0 = dma_w(0)
        for i in range(4):
            p(f'v_add_u32 v{a}, s{t0}, v0')
            if i: p(f'v_add_u32 v{a}, {64*i}, v{a}')
            p(f'v_mul_u32_u24 v{b}, s{t1}, v{a}\nv_lshrrev_b32 v{b}, 16, v{b}')
            p(f'v_mul_u32_u24 v{c}, 30, v{b}\nv_sub_u32 v{c}, v{a}, v{c}')
            p(f'v_mul_u32_u24 v{d}, 26, v{c}\nv_lshrrev_b32 v{d}, 8, v{d}')
            p(f'v_mul_u32_u24 v{d}, 1120, v{d}\nv_lshl_add_u32 v{d}, v{c}, 4, v{d}\nv_add_u32 v{d}, s{t2}, v{d}')
            p(f'v_and_b32 v{c}, 12, v{b}\nv_lshlrev_b32 v{c}, 1, v{c}\nv_bfe_u32 v{e}, v{b}, 4, 1\nv_lshl_add_u32 v{c}, v{e}, 2, v{c}')
            p(f'v_and_b32 v{b}, 3, v{b}\nv_add_u32 v{c}, v{c}, v{b}\nv_mad_u32_u24 v{WD+i}, v{c}, s{t3}, v{d}')
            p(*w0[i])
        for s, tg in dma_w(1): p(s, tg)
        for P in range(1, 10):
            p(f's_add_u32 s{sP+P}, s{sP+P-1}, 128\ns_cmp_ge_u32 s{sP+P}, 1280\ns_cselect_b32 s{t0}, 1280, 0\ns_sub_u32 s{sP+P}, s{sP+P}, s{t0}')
        for s, tg in dma_x(1) + dma_w(2) + dma_w(3): p(s, tg)

        self.srd(SWO, 8, 819200)
        self.srd(SOUT, 12, 5242880)
        self.srd(SDBG, 14, 256)
        n, g = 165, 166
        p(f'v_and_b32 v{n}, 15, v0\nv_lshrrev_b32 v{g}, 4, v0\nv_mov_b32 v{ZERO}, 0\nv_lshlrev_b32 v{L16}, 4, v0')
        p(f'v_lshrrev_b32 v{a}, 1, v{n}\nv_xor_b32 v{a}, v{a}, v{g}\nv_lshlrev_b32 v{a}, 4, v{a}\nv_lshl_add_u32 v{a}, v{n}, 7, v{a}')
        p(f'v_add_u32 v{XR}, {XB}, v{a}\nv_xor_b32 v{XR+1}, 64, v{XR}')
        p(f'v_lshrrev_b32 v{a}, 2, v0\nv_and_b32 v{b}, 3, v0\nv_lshlrev_b32 v{b}, 3, v{b}')
        p(f'v_mul_u32_u24 v{c}, 480, v{a}\nv_add_u32 v{c}, v{c}, v{b}')
        p(f's_mul_i32 s{t0}, s{S_WAVE}, 96\ns_add_u32 s{t0}, s{t0}, 96\ns_min_u32 s{t1}, s{S_WAVE}, 2\ns_lshl_b32 s{t1}, s{t1}, 5')
        p(f'v_add_u32 v{WRa}, s{t0}, v{c}\nv_add_u32 v{WRb}, s{t1}, v{c}')
        p(f'v_mul_u32_u24 v{c}, 160, v{a}\nv_add_u32 v{WOR}, v{c}, v{b}\nv_add_u32 v{WOR2}, 40960, v{WOR}')
        p(f'v_lshlrev_b32 v{a}, 3, v{g}\nv_add_u32 v{a}, {EXB}, v{a}')
        p(f'v_mul_u32_u24 v{b}, 488, v{n}\nv_add_u32 v{b}, v{b}, v{a}\nv_add_u32 v{c}, {8*488}, v{b}')
        p(f'v_add_u32 v{EW1}, s{t0}, v{c}\nv_add_u32 v{EWb}, s{t1}, v{c}')
        p(f'v_bfe_u32 v{c}, v0, 3, 1\nv_mul_u32_u24 v{c}, {32*488}, v{c}\nv_add_u32 v{b}, v{b}, v{c}\nv_add_u32 v{EW0}, s{t0}, v{b}')
        p(f's_and_b32 s{t0}, s{S_WAVE}, 1\ns_lshr_b32 s{t1}, s{S_WAVE}, 1')
        p(f's_mul_i32 s{t2}, s{t0}, {40*488}\ns_mul_i32 s{t3}, s{t1}, 80\ns_add_u32 s{t2}, s{t2}, s{t3}\ns_add_u32 s{t2}, s{t2}, {EXB}')
        hh = 167
        p(f'v_lshrrev_b32 v{hh}, 5, v0\nv_mul_u32_u24 v{a}, 40, v{hh}\nv_add_u32 v{a}, s{t2}, v{a}')
        p(f'v_and_b32 v{b}, 31, v0\nv_mul_u32_u24 v{b}, 488, v{b}\nv_add_u32 v{QK}, v{a}, v{b}')
        p(f'v_and_b32 v{b}, 16, v0\nv_and_b32 v{c}, 3, v0\nv_lshl_add_u32 v{b}, v{c}, 2, v{b}\nv_bfe_u32 v{c}, v0, 2, 2\nv_add_u32 v{b}, v{b}, v{c}')
        p(f'v_mul_u32_u24 v{b}, 488, v{b}\nv_add_u32 v{a}, v{a}, v{b}\nv_add_u32 v{a}, 320, v{a}')
        p(f'v_lshl_add_u32 v{VA}, v{hh}, 3, v{a}\nv_xor_b32 v{c}, 1, v{hh}\nv_lshl_add_u32 v{VB}, v{c}, 5, v{a}')
        p(f's_lshl_b32 s{t2}, s{sRB}, 2\ns_lshl_b32 s{t0}, s{t0}, 1\ns_add_u32 s{t2}, s{t2}, s{t0}\ns_mul_i32 s{t2}, s{t2}, 20480')
        p(f's_mul_i32 s{t3}, s{sQ}, 2560\ns_add_u32 s{t2}, s{t2}, s{t3}\ns_mul_i32 s{t1}, s{t1}, 1280\ns_add_u32 s{t2}, s{t2}, s{t1}')
        p(f'v_and_b32 v{a}, 1, v{g}\nv_mul_u32_u24 v{a}, 20480, v{a}\nv_lshl_add_u32 v{a}, v{n}, 4, v{a}\nv_add_u32 v{a}, s{t2}, v{a}')
        p(f'v_mul_u32_u24 v{b}, 768, v{hh}\nv_add_u32 v{OS1}, v{a}, v{b}\nv_add_u32 v{a}, 512, v{a}\nv_lshl_or_b32 v{OS2}, v{hh}, 30, v{a}')
        p(f's_cmp_eq_u32 s{sRB}, 0\ns_cselect_b32 s{t0}, 8, 0')
        p(f'v_and_b32 v{a}, 3, v0\nv_add_u32 v{b}, 1, v{a}\nv_and_b32 v{c}, 28, v0\nv_sub_u32 v{c}, s{t0}, v{c}\nv_max_i32 v{b}, v{b}, v{c}')
        p(f'v_add_u32 v{a}, 8, v{a}\nv_sub_u32 v{a}, v{a}, v{b}')
        for m in range(1, 12):
            p(f'v_sub_u32 v{c}, {m}, v{b}\nv_cmp_le_u32 {sr(MASK0 + 2*(m-1), 2)}, v{c}, v{a}')
        p(f's_movk_i32 s{t1}, 6554\ns_mul_i32 s{t2}, s{sQ}, 160\ns_movk_i32 s{t3}, 1280')
        p(f's_mul_i32 s{sOW}, s{S_WAVE}, 40960\ns_mul_i32 s{sMO}, s{S_WAVE}, 5120')
        for i in range(5):
            p(f'v_add_u32 v{a}, {64*i}, v0\nv_mul_u32_u24 v{b}, s{t1}, v{a}\nv_lshrrev_b32 v{b}, 16, v{b}')
            p(f'v_mul_u32_u24 v{c}, 10, v{b}\nv_sub_u32 v{d}, v{a}, v{c}\nv_lshlrev_b32 v{d}, 4, v{d}\nv_add_u32 v{d}, s{t2}, v{d}')
            p(f'v_and_b32 v{c}, 12, v{b}\nv_lshlrev_b32 v{c}, 1, v{c}\nv_bfe_u32 v{e}, v{b}, 4, 1\nv_lshl_add_u32 v{c}, v{e}, 2, v{c}')
            p(f'v_and_b32 v{b}, 3, v{b}\nv_add_u32 v{c}, v{c}, v{b}\nv_mad_u32_u24 v{OD+i}, v{c}, s{t3}, v{d}')
        p(f's_lshl_b32 s{t0}, s{S_WAVE}, 12\ns_add_u32 s{t0}, s{t0}, 20480')
        p(f'v_mul_u32_u24 v{a}, 176, v{n}\nv_lshl_add_u32 v{a}, v{g}, 3, v{a}\nv_add_u32 v{SGW}, s{t0}, v{a}')
        p(f'v_and_b32 v{a}, 7, v0\nv_lshlrev_b32 v{FLG}, 2, v{a}')
        sc = f2u(20 ** -0.5); l2e = f2u(math.log2(math.e))
        p(f's_mov_b32 s{sC0}, {sc}\ns_mov_b32 s{sC0+1}, {sc}\ns_mov_b32 s{sC0+2}, {l2e}\ns_mov_b32 s{sC0+3}, {l2e}\ns_mov_b32 s{sC0+4}, 0xffff0000\ns_mov_b32 s{sC0+5}, 0xff800000')

        def reads(s_):
            fb = FB[s_ & 1]; out = []
            xb = ((s_ >> 1) & 1) * 10240; wb = (s_ & 3) * 15360
            for sg in range(4):
                for hi in range(2):
                    ad, off = (WRa, 32 * sg) if sg < 3 else (WRb, 0)
                    out.append((f'ds_read_b64_tr_b16 {vr(fb + 20 + 4*sg + 2*hi, 2)}, v{ad} offset:{wb + hi * 7680 + off}', f'R{s_}'))
            for t in range(5):
                out.insert(2 + 2 * t if t < 4 else len(out), (f'ds_read_b128 {vr(fb + 4*t, 4)}, v{XR + (s_ & 1)} offset:{xb + t * 2048}', f'R{s_}'))
            return out

        tiles = [(sg, t) for t in range(5) for sg in range(4) if not (sg == 3 and t == 0)]

        def mfma(s_, sg, t):
            fb = FB[s_ & 1]; ac = vr(acc(sg, t), 4)
            return f'v_mfma_f32_16x16x32_bf16 {ac}, {vr(fb + 20 + 4*sg, 4)}, {vr(fb + 4*t, 4)}, {ac if s_ else 0}'

        self.ts(1)
        p.wait(vm=['X0', 'W0'])
        p('s_barrier')
        for s, tg in reads(0): p(s, tg)
        lne = self.lab('noel2'); ll = self.lab('el')
        p(f's_or_b32 s{t0}, s2, s{S_WAVE}\ns_cmp_lg_u32 s{t0}, 0\ns_cbranch_scc1 {lne}')
        p(f's_mov_b32 s{t0}, 0\n{ll}:\ns_add_u32 s{t0}, s{t0}, 1\ns_mov_b64 s[{t2}:{t3}], 0')
        for r in range(168, 176):
            p(f'v_cmp_eq_u32 vcc, s{t0}, v{r}\ns_or_b64 s[{t2}:{t3}], s[{t2}:{t3}], vcc')
        p(f's_cmp_lg_u64 s[{t2}:{t3}], 0\ns_cbranch_scc1 {ll}')
        p(f'v_mov_b32 v168, s{t0}\ns_mov_b64 exec, 1')
        n0 = len(p.vm)
        p(f'buffer_store_dword v168, v{ZERO}, {sr(SDBG,4)}, 0 offen sc1')
        del p.vm[n0:]
        p(f's_mov_b64 exec, -1\n{lne}:')
        p.wait(vm=['W1'], lg='all')
        self.ts(2); self.tc(14)
        p('s_barrier')

        CV = FB[0]
        for s_ in range(20):
            fill = []
            dm = []
            if s_ & 1 and (s_ + 3) // 2 <= 9: dm += dma_x((s_ + 3) // 2)
            if s_ + 4 <= 19: dm += dma_w(s_ + 4)
            if s_ == 17: dm += dma_wo(0)
            if s_ == 18: dm += dma_wo(1)
            rd = reads(s_ + 1) if s_ < 19 else []
            slots = [[] for _ in range(19)]
            for i, x in enumerate(rd): slots[i].append(x)
            for i, x in enumerate(dm): slots[min(18, 1 + (i * 17) // max(1, len(dm)))].append(x)
            for i, (sg, t) in enumerate(tiles):
                if 'nomfma' not in self.exp: p(mfma(s_, sg, t))
                for x in slots[i]:
                    if 'noread' in self.exp and x[1].startswith('R'): continue
                    if 'nox' in self.exp and x[1].startswith('X'): p('s_nop 0'); p.vm.append(x[1]); p.vm_fake = True; continue
                    p(*x)
                if s_ == 19 and i >= 3:
                    self.exw(tiles[i - 3], acc, CV, i - 3, EW0, EW1, EWb)
            if s_ < 19:
                w = []
                if s_ + 2 <= 19:
                    w.append(f'W{s_+2}')
                    if s_ % 2 == 0: w.append(f'X{(s_+2)//2}')
                p.wait(vm=w or None, lg='all')
                if s_ in (3, 9, 15, 18): self.ts({3: 3, 9: 4, 15: 5, 18: 6}[s_])
                p('s_barrier')
        for i in range(16, 19): self.exw(tiles[i], acc, CV, i, EW0, EW1, EWb)
        p(f'buffer_load_dword v{NON}, v{ZERO}, {sr(SDBG,4)}, 0 offen sc1', 'NON')
        p.wait(lg='all')
        p('s_barrier')
        self.ts(7)

        Q, K, V, S, T, O, PP = 4, 16, 48, 80, 92, 104, 124
        for cc in range(5): p(f'ds_read_b64 {vr(Q + 2*cc, 2)}, v{QK} offset:{8*488 + 8*cc}', 'Q')
        for cc in range(5):
            for kb in range(3): p(f'ds_read_b64 {vr(K + 10*kb + 2*cc, 2)}, v{QK} offset:{4*kb*488 + 160 + 8*cc}', f'K{cc}')
        vrd = []
        for t in range(5):
            for kb in range(3):
                ad, off = (VA, 8 * t) if t < 4 else (VB, 0)
                vrd.append(f'ds_read_b64_tr_b16 {vr(V + 6*t + 2*kb, 2)}, v{ad} offset:{4*kb*488 + off}')
        for cc in range(5):
            p.wait(lg=f'K{cc}')
            for kb in range(3):
                s4 = vr(S + 4 * kb, 4)
                p(f'v_mfma_f32_4x4x4_16b_bf16 {s4}, {vr(K + 10*kb + 2*cc, 2)}, {vr(Q + 2*cc, 2)}, {s4 if cc else 0}')
            for x in vrd[3 * cc:3 * cc + 3]: p(x, 'V')
        cS, cL, cM, cI = sr(sC0, 2), sr(sC0 + 2, 2), f's{sC0+4}', f's{sC0+5}'

        def round16(src, dst):
            for i in range(6): p(f'v_cvt_pk_bf16_f32 v{T+i}, v{src+2*i}, v{src+2*i+1}')
            for i in range(6): p(f'v_lshlrev_b32 v{dst+2*i}, 16, v{T+i}\nv_and_b32 v{dst+2*i+1}, {cM}, v{T+i}')
        if self.mimic: round16(S, S)
        for i in range(6): p(f'v_pk_mul_f32 {vr(S+2*i,2)}, {vr(S+2*i,2)}, {cS}')
        if self.mimic: round16(S, S)
        p(f'v_mov_b32 v{T}, {cI}\nv_mov_b32 v{S}, {cI}')
        for m in range(1, 12): p(f'v_cndmask_b32 v{S+m}, v{T}, v{S+m}, {sr(MASK0 + 2*(m-1), 2)}')
        p(f'v_max3_f32 v{T}, v{S+1}, v{S+2}, v{S+3}\nv_max3_f32 v{T+1}, v{S+4}, v{S+5}, v{S+6}\nv_max3_f32 v{T+2}, v{S+7}, v{S+8}, v{S+9}')
        p(f'v_max3_f32 v{T}, v{T}, v{S+10}, v{S+11}\nv_max3_f32 v{T}, v{T}, v{T+1}, v{T+2}')
        p(f'v_mov_b32 v{T+1}, v{T}')
        for i in range(6): p(f'v_pk_add_f32 {vr(S+2*i,2)}, {vr(S+2*i,2)}, {vr(T,2)} neg_lo:[0,1] neg_hi:[0,1]')
        for i in range(6): p(f'v_pk_mul_f32 {vr(S+2*i,2)}, {vr(S+2*i,2)}, {cL}')
        for m in range(12): p(f'v_exp_f32 v{S+m}, v{S+m}')
        p(f'v_pk_add_f32 {vr(T,2)}, {vr(S,2)}, {vr(S+2,2)}\nv_pk_add_f32 {vr(T+2,2)}, {vr(S+4,2)}, {vr(S+6,2)}\nv_pk_add_f32 {vr(T+4,2)}, {vr(S+8,2)}, {vr(S+10,2)}')
        p(f'v_pk_add_f32 {vr(T,2)}, {vr(T,2)}, {vr(T+2,2)}\nv_pk_add_f32 {vr(T,2)}, {vr(T,2)}, {vr(T+4,2)}')
        p(f'v_add_f32 v{T}, v{T}, v{T+1}\nv_rcp_f32 v{T}, v{T}\ns_nop 0\nv_mov_b32 v{T+1}, v{T}')
        for i in range(6): p(f'v_pk_mul_f32 {vr(S+2*i,2)}, {vr(S+2*i,2)}, {vr(T,2)}')
        for i in range(6): p(f'v_cvt_pk_bf16_f32 v{PP+i}, v{S+2*i}, v{S+2*i+1}')
        p.wait(lg='V')
        for kb in range(3):
            for t in range(5):
                o4 = vr(O + 4 * t, 4)
                p(f'v_mfma_f32_4x4x4_16b_bf16 {o4}, {vr(V + 6*t + 2*kb, 2)}, {vr(PP + 2*kb, 2)}, {o4 if kb else 0}')
        OC = 132
        for t in (4, 0, 1, 2, 3):
            dst = OC + 2 * t
            p(f'v_cvt_pk_bf16_f32 v{dst}, v{O+4*t}, v{O+4*t+1}\nv_cvt_pk_bf16_f32 v{dst+1}, v{O+4*t+2}, v{O+4*t+3}')
        p(f'v_permlane32_swap_b32 v{OC+8}, v{OC+10}\nv_permlane32_swap_b32 v{OC+9}, v{OC+11}')
        p(f'buffer_store_dwordx4 {vr(OC,4)}, v{OS1}, {sr(SWS,4)}, 0 offen sc1', 'OST')
        p(f'buffer_store_dwordx4 {vr(OC+4,4)}, v{OS1}, {sr(SWS,4)}, 0 offen offset:256 sc1', 'OST')
        p(f'buffer_store_dwordx4 {vr(OC+8,4)}, v{OS2}, {sr(SWS,4)}, 0 offen sc1', 'OST')
        p.wait(vm=['WO1', 'NON'])
        self.ts(8)
        p('s_barrier')
        OF, WR, DB, AC2 = 4, 144, 84, 124
        dm = dma_wo(3) + dma_wo(4)

        def wo_reads(st, dst):
            out = []
            base = wo_base(st); ad = WOR
            if base >= 40960: base -= 40960; ad = WOR2
            for tl in range(5):
                for hi in range(2):
                    out.append((f'ds_read_b64_tr_b16 {vr(dst + 4*tl + 2*hi, 2)}, v{ad} offset:{base + hi * 2560 + tl * 32}', f'WOR{st}'))
            return out
        rr = []
        for st in range(4): rr += wo_reads(st, WR + 20 * st)
        for i, x in enumerate(dm):
            p(*x)
            for y in rr[4 * i:4 * i + 4]: p(*y)
        self.get_nonce(NON, ZERO, sN, sCNT)
        p(f'v_mov_b32 v{NON}, s{sN}')
        p(f's_lshl_b32 s{t0}, s{sRB}, 7\ns_add_u32 s{t0}, s{t0}, {WS_FO}\ns_lshl_b32 s{t1}, s{sQ}, 2\ns_add_u32 s{t1}, s{t1}, s{t0}')
        p.wait(vm='OST', lg='all')
        self.ts(9)
        p('s_barrier')
        lsk = self.lab('noflag')
        p(f's_cmp_lg_u32 s{S_WAVE}, 0\ns_cbranch_scc1 {lsk}\ns_mov_b64 exec, 1')
        n0 = len(p.vm)
        p(f'buffer_store_dword v{NON}, v{ZERO}, {sr(SWS,4)}, s{t1} offen sc1')
        del p.vm[n0:]
        p(f's_mov_b64 exec, -1\n{lsk}:')
        for x in dma_wo(2): p(*x)
        for x in wo_reads(4, DB): p(*x)
        p(f's_lshl_b32 s{t2}, s{sRB}, 2\ns_add_u32 s{t2}, s{t2}, s{S_WAVE}\ns_mul_i32 s{t2}, s{t2}, 20480')
        l0, l1 = self.lab('pollo'), self.lab('pollo_ok')
        p(f's_mov_b32 s{sCNT}, 0\n{l0}:')
        p(f'buffer_load_dword v1, v{FLG}, {sr(SWS,4)}, s{t0} offen sc1', 'POLL')
        p('s_waitcnt vmcnt(0)')
        p(f'v_cmp_ne_u32 vcc, v1, v{NON}\ns_add_u32 s{sCNT}, s{sCNT}, 1\ns_cbranch_vccz {l1}')
        p(f's_cmp_gt_u32 s{sCNT}, {SPIN_CAP}\ns_cbranch_scc1 {l1}\ns_sleep 1\ns_branch {l0}\n{l1}:')
        for j in range(20):
            if j and j % 4 == 0: p(f's_add_u32 s{t2}, s{t2}, 4096')
            p(f'buffer_load_dwordx4 {vr(OF + 4*j, 4)}, v{L16}, {sr(SWS,4)}, s{t2} offen offset:{1024 * (j % 4)} sc1', f'O{j}')
        self.ts(10)
        SGR, SGG = 224, 228
        p(f's_lshl_b32 s{t0}, s{sRB}, 6\ns_and_b32 s{t1}, s{S_WAVE}, 1\ns_lshl_b32 s{t1}, s{t1}, 5\ns_add_u32 s{t0}, s{t0}, s{t1}')
        p(f's_lshr_b32 s{t1}, s{S_WAVE}, 1\ns_add_u32 s{t0}, s{t0}, s{t1}\ns_mul_i32 s{t0}, s{t0}, 2560\ns_mul_i32 s{t1}, s{sQ}, 160\ns_add_u32 s{t0}, s{t0}, s{t1}')
        p(f's_lshl_b32 s{t1}, s{S_WAVE}, 12\ns_add_u32 s{t1}, s{t1}, 20480\ns_movk_i32 s{t3}, 6554')
        ta, tb, tc = 231, 232, 233
        for i in range(3):
            p(f'v_add_u32 v{ta}, {64*i}, v0\nv_mul_u32_u24 v{tb}, s{t3}, v{ta}\nv_lshrrev_b32 v{tb}, 16, v{tb}')
            p(f'v_mul_u32_u24 v{tc}, 10, v{tb}\nv_sub_u32 v{ta}, v{ta}, v{tc}\nv_lshlrev_b32 v{ta}, 4, v{ta}')
            p(f'v_mul_u32_u24 v{tc}, 176, v{tb}\nv_add3_u32 v{SGR+i}, v{tc}, v{ta}, s{t1}')
            p(f'v_mul_u32_u24 v{tc}, 5120, v{tb}\nv_add3_u32 v{SGG+i}, v{tc}, v{ta}, s{t0}')
        p(f'v_lshrrev_b32 v{ta}, 5, v0\nv_lshl_or_b32 v{SGG+2}, v{ta}, 30, v{SGG+2}')
        for j in range(20):
            src = WR + 20 * j if j < 4 else DB + 20 * (j & 1)
            p.wait(vm=f'O{j}', lg=f'WOR{j}' if j >= 4 else None)
            if j == 7: p('s_barrier')
            nx = wo_reads(j + 1, DB + 20 * ((j + 1) & 1)) if 4 <= j < 19 else []
            for tl in range(5):
                ac = vr(AC2 + 4 * tl, 4)
                p(f'v_mfma_f32_16x16x32_bf16 {ac}, {vr(src + 4*tl, 4)}, {vr(OF + 4*j, 4)}, {ac if j else 0}')
                for x in nx[2 * tl:2 * tl + 2]: p(*x)
        self.ts(11); self.tc(15)
        for tl in range(5):
            p(f'v_cvt_pk_bf16_f32 v{4+2*tl}, v{AC2+4*tl}, v{AC2+4*tl+1}\nv_cvt_pk_bf16_f32 v{5+2*tl}, v{AC2+4*tl+2}, v{AC2+4*tl+3}')
            p(f'ds_write_b64 v{SGW}, {vr(4+2*tl, 2)} offset:{32*tl}')
        p.wait(lg='all')
        for i in range(3): p(f'ds_read_b128 {vr(16+4*i, 4)}, v{SGR+i}', f'SG{i}')
        for i in range(3):
            p.wait(lg=f'SG{i}')
            p(f'buffer_store_dwordx4 {vr(16+4*i, 4)}, v{SGG+i}, {sr(SOUT,4)}, 0 offen{self.omod}')
        if self.ts_on:
            p('s_waitcnt vmcnt(0)')
            self.ts(12)
        self.ts_store()
        if self.calib:
            p(f's_add_u32 s100, s100, {self.calib}\nL_cal:\ns_memrealtime s[98:99]\ns_waitcnt lgkmcnt(0)\ns_sub_u32 s98, s98, s100\ns_cmp_lt_i32 s98, 0\ns_cbranch_scc1 L_cal')
        p('s_endpgm')

    def exw(self, tile, acc, CV, i, EW0, EW1, EWb):
        sg, t = tile
        r = CV + 2 * i if i < 18 else 158
        ac = acc(sg, t)
        self.p(f'v_cvt_pk_bf16_f32 v{r}, v{ac}, v{ac+1}\nv_cvt_pk_bf16_f32 v{r+1}, v{ac+2}, v{ac+3}')
        rowoff = [0, 0, 16, 40, 56][t] * 488
        if sg == 3: ad, off = EWb, rowoff
        elif t == 0: ad, off = EW0, 32 * sg
        else: ad, off = EW1, rowoff + 32 * sg
        self.p(f'ds_write_b64 v{ad}, {vr(r, 2)} offset:{off}')

    def branchB(self):
        p = self.p
        p.vm = []; p.lg = []
        sCLS, sS2, sTYP, sPAR, sN, sCNT = 44, 45, 46, 47, 48, 49
        sSEL = 50
        t0, t1, t2, t3 = 56, 57, 58, 59
        sE32 = 60
        sKAP, sDU = 62, 63
        a, b, c, d, e = 240, 241, 242, 243, 244
        n, g, ZERO, NON, L16 = 245, 246, 247, 248, 249
        FBUF, STG = 40960, 53248
        p('L_B:')
        p(f's_and_b32 s{t0}, s2, 7\ns_lshr_b32 s{t1}, s{S_ID}, 3\ns_and_b32 s{sCLS}, s{t1}, 3\ns_lshr_b32 s{t1}, s{t1}, 2')
        p(f's_lshl_b32 s{t0}, s{t0}, 3\ns_add_u32 s{sS2}, s{t0}, s{t1}\ns_lshr_b32 s{sTYP}, s{sCLS}, 1\ns_and_b32 s{sPAR}, s{sCLS}, 1')
        p(f'v_and_b32 v{n}, 15, v0\nv_lshrrev_b32 v{g}, 4, v0\nv_mov_b32 v{ZERO}, 0\nv_lshlrev_b32 v{L16}, 4, v0')
        XD = 250
        p(f's_lshl_b32 s{t0}, s{S_WAVE}, 2\ns_mov_b32 s{t1}, 81920')
        p(f'v_add_u32 v{a}, s{t0}, v{g}\nv_xor_b32 v{a}, v{a}, v{n}\nv_lshlrev_b32 v{a}, 4, v{a}\nv_mad_u32_u24 v{XD}, v{g}, s{t1}, v{a}')
        p(f's_lshl_b32 s{t0}, s{S_WAVE}, 8\ns_add_u32 s{t0}, s{t0}, s{sS2}\ns_mul_i32 s{t0}, s{t0}, 1280\ns_lshl_b32 s{t1}, s{S_WAVE}, 10')
        p('s_waitcnt lgkmcnt(0)')
        if self.ts_on: p(f'v_writelane_b32 v{V_TS}, s100, 0')
        self.srd(SX, 10, 2621440)
        for q in range(2):
            for bc in range(5):
                p(f's_add_u32 m0, s{t1}, {bc * 8192 + q * 4096}\ns_add_u32 s{t2}, s{t0}, {q * 1024 * 1280 + bc * 256}')
                p(f'buffer_load_dwordx4 v{XD}, {sr(SX,4)}, s{t2} offen lds', 'X')
        if self.codepf:
            lsk = self.lab('nopf')
            p(f's_cmp_lg_u32 s{S_WAVE}, 3\ns_cbranch_scc1 {lsk}')
            p(f's_getpc_b64 s[{t2}:{t3}]\nL_pc:')
            p(f's_lshr_b32 s{t0}, s{S_ID}, 3\ns_lshl_b32 s{t0}, s{t0}, 10\ns_sub_u32 s{t0}, s{t0}, L_pc-{KN}_kernel')
            p(f'v_and_b32 v{a}, 7, v0\nv_lshlrev_b32 v{a}, 7, v{a}\nv_add_u32 v{a}, s{t0}, v{a}\nv_min_i32 v{a}, L_exit-L_pc, v{a}')
            p(f'v_ashrrev_i32 v{b}, 31, v{a}\nv_mov_b32 v{c}, s{t3}\nv_add_co_u32 v{a}, vcc, s{t2}, v{a}\nv_addc_co_u32 v{b}, vcc, v{b}, v{c}, vcc')
            n0 = len(p.vm)
            p(f'global_load_dword v255, v[{a}:{b}], off')
            del p.vm[n0:]
            p(f'{lsk}:')
        self.srd(SWS, 16, WS_SIZE)
        self.srd(SOUT, 12, 5242880)
        self.srd(SDBG, 14, 256)
        p(f's_mov_b32 s{sE32}, -1\ns_mov_b32 s{sE32+1}, 0')
        p(f's_xor_b32 s{t2}, s{sPAR}, s{sTYP}')
        for i, s in enumerate((sPAR, sTYP, t2)):
            p(f's_lshl_b32 s{t0}, s{s}, 15\ns_or_b32 s{sSEL+2*i}, s{t0}, 0x3f80\ns_lshl_b32 s{sSEL+2*i+1}, s{sSEL+2*i}, 16')
        FA = 200
        p(f's_and_b32 s{t0}, s{S_WAVE}, 1\ns_lshl_b32 s{t0}, s{t0}, 12\ns_and_b32 s{t1}, s{S_WAVE}, 2')
        p(f'v_lshlrev_b32 v{d}, 8, v{n}\nv_add_u32 v{d}, s{t0}, v{d}')
        p(f'v_mul_u32_u24 v{e}, 5, v{g}\nv_add_u32 v{e}, s{t1}, v{e}')

        def chaddr(dst, sign, const):
            p(f'v_add_u32 v{a}, {const}, v{e}' if sign > 0 else f'v_sub_u32 v{a}, {const}, v{e}')
            p(f'v_min_u32 v{a}, 79, v{a}')
            p(f'v_xor_b32 v{b}, v{a}, v{n}\nv_and_b32 v{b}, 15, v{b}\nv_lshl_add_u32 v{b}, v{b}, 4, v{d}\nv_lshrrev_b32 v{a}, 4, v{a}\nv_lshl_add_u32 v{dst}, v{a}, 13, v{b}')
        for i in range(3):
            chaddr(FA + 4 * i, 1, i); chaddr(FA + 4 * i + 1, 1, 40 + i)
            chaddr(FA + 4 * i + 2, -1, 79 - i); chaddr(FA + 4 * i + 3, -1, 39 - i)
        chaddr(FA + 12, -1, 80); chaddr(FA + 13, -1, 40)
        ZA = 214
        p(f'v_xor_b32 v{a}, 4, v{n}\nv_lshlrev_b32 v{a}, 4, v{a}\nv_lshl_add_u32 v{ZA}, v{n}, 8, v{a}')
        p(f'v_xor_b32 v{a}, 12, v{n}\nv_lshlrev_b32 v{a}, 4, v{a}\nv_lshl_add_u32 v{ZA+1}, v{n}, 8, v{a}')
        FW = 216
        p(f's_and_b32 s{t0}, s{S_WAVE}, 1\ns_mul_i32 s{t0}, s{t0}, 5120\ns_lshl_b32 s{t1}, s{t1}, 10\ns_add_u32 s{t0}, s{t0}, s{t1}\ns_add_u32 s{t0}, s{t0}, {FBUF}')
        p(f'v_add_u32 v{FW}, s{t0}, v{L16}')
        MX = 4
        p(f's_lshl_b32 s{t0}, s{S_WAVE}, 5\ns_add_u32 s{t0}, s{t0}, s{sPAR}\ns_mul_i32 s{t1}, s{sTYP}, {fh(0.25)}')
        p(f'v_lshl_add_u32 v{a}, v{n}, 1, s{t0}\nv_cvt_f32_u32 v{e}, v{g}\nv_mul_f32 v{e}, {fh(40.0)}, v{e}')
        TT = 220
        for tl in range(3):
            base = MX + 22 * tl
            p(f'v_add_u32 v{b}, {128*tl}, v{a}\nv_cvt_f32_u32 v{b}, v{b}\nv_mul_f32 v{c}, {fh(1/640)}, v{b}\nv_fma_f32 v{d}, v{c}, v{e}, s{t1}')
            p(f'v_mul_f32 v{b}, {fh(0.25)}, v{b}\nv_add_f32 v{b}, s{t1}, v{b}\nv_cos_f32 v{b}, v{b}\nv_mov_b32 v{base+1}, 0\nv_cvt_pk_bf16_f32 v{base}, v{b}, 0')
            for k0 in range(0, 40, 8):
                for i in range(8):
                    p(f'v_fmamk_f32 v{TT+i}, v{c}, {fh(float(k0+i))}, v{d}')
                for i in range(8): p(f'v_cos_f32 v{TT+i}, v{TT+i}')
                for i in range(4): p(f'v_cvt_pk_bf16_f32 v{base + 2 + k0//2 + i}, v{TT+2*i}, v{TT+2*i+1}')
        AL = 72
        p(f's_cmp_eq_u32 s{sTYP}, 0\ns_cselect_b32 s{t0}, 0, {fh(0.25)}\ns_cselect_b32 s{t1}, {fh(-0.25)}, 0')
        p(f'v_cvt_f32_u32 v{e}, v{g}\nv_mul_f32 v{e}, 4.0, v{e}')
        for rt in range(2):
            p(f'v_lshrrev_b32 v{a}, 1, v{n}\nv_add_u32 v{a}, {8*rt}, v{a}\nv_and_b32 v{b}, 1, v{n}\nv_mov_b32 v{c}, s{t0}\nv_mov_b32 v{d}, s{t1}')
            p(f'v_cmp_eq_u32 vcc, 1, v{b}\ns_nop 1\nv_cndmask_b32 v{c}, v{c}, v{d}, vcc')
            if rt == 0:
                p(f'v_lshlrev_b32 v{b}, 4, v{b}\nv_cmp_eq_u32 vcc, 0, v{a}\ns_nop 1\nv_cndmask_b32 v{a}, v{a}, v{b}, vcc\nv_cndmask_b32 v{c}, v{c}, v{ZERO}, vcc')
            p(f'v_cvt_f32_u32 v{a}, v{a}\nv_mul_f32 v{a}, {fh(1/32)}, v{a}\nv_fma_f32 v{d}, v{a}, v{e}, v{c}')
            for i in range(8): p(f'v_fmamk_f32 v{TT+i}, v{a}, {fh(float(i if i < 4 else 12 + i))}, v{d}')
            for i in range(8): p(f'v_cos_f32 v{TT+i}, v{TT+i}')
            for i in range(4): p(f'v_cvt_pk_bf16_f32 v{AL + 4*rt + i}, v{TT+2*i}, v{TT+2*i+1}')
        SW_, SR_, SG_, XR_, XG_ = 217, 218, 219, 228, 229
        p(f's_lshl_b32 s{t0}, s{S_WAVE}, 5\ns_add_u32 s{t0}, s{t0}, {STG}')
        p(f'v_mul_u32_u24 v{a}, 400, v{n}\nv_lshl_add_u32 v{a}, v{g}, 3, v{a}\nv_add_u32 v{SW_}, s{t0}, v{a}')
        p(f's_lshl_b32 s{t0}, s{S_WAVE}, 3\nv_lshrrev_b32 v{a}, 3, v0\nv_add_u32 v{a}, s{t0}, v{a}\nv_and_b32 v{b}, 7, v0')
        p(f'v_mul_u32_u24 v{c}, 400, v{a}\nv_add_u32 v{c}, {STG}, v{c}\nv_lshl_add_u32 v{SR_}, v{b}, 4, v{c}')
        p(f'v_lshl_add_u32 v{c}, v{b}, 6, v{c}\nv_add_u32 v{XR_}, 64, v{c}')
        p(f'v_lshrrev_b32 v{c}, 1, v{a}\nv_mul_u32_u24 v{c}, 5, v{c}\nv_and_b32 v{a}, 1, v{a}\nv_lshlrev_b32 v{a}, 6, v{a}\nv_add_u32 v{a}, s{sS2}, v{a}')
        p(f'v_lshrrev_b32 v{d}, 2, v{b}\nv_add_u32 v{d}, v{d}, v{c}\nv_lshlrev_b32 v{d}, 15, v{d}\nv_lshl_add_u32 v{d}, v{a}, 8, v{d}')
        p(f's_lshl_b32 s{t0}, s{sCLS}, 6\ns_add_u32 s{t0}, s{t0}, {WS_G}\nv_and_b32 v{e}, 3, v{b}\nv_lshl_add_u32 v{d}, v{e}, 4, v{d}\nv_add_u32 v{SG_}, s{t0}, v{d}')
        SG2 = 230
        p(f'v_bfe_u32 v{e}, v0, 2, 1\nv_lshl_or_b32 v{SG2}, v{e}, 30, v{SG_}')
        p(f'v_add_u32 v{d}, v{b}, v{c}\nv_lshlrev_b32 v{d}, 11, v{d}\nv_lshl_add_u32 v{d}, v{a}, 4, v{d}')
        p(f's_lshl_b32 s{t0}, s{sTYP}, 3\ns_add_u32 s{t0}, s{t0}, {WS_EX}\nv_add_u32 v{d}, s{t0}, v{d}')
        p(f'v_cmp_lt_u32 vcc, 4, v{b}\nv_mov_b32 v{e}, 0x40000000\ns_nop 0\nv_cndmask_b32 v{XG_}, v{d}, v{e}, vcc\nv_cndmask_b32 v{XR_}, v{XR_}, v{SR_}, vcc')
        self.ts(1)
        p.wait(vm='all')
        p('s_barrier')
        p(f'buffer_load_dword v{NON}, v{ZERO}, {sr(SDBG,4)}, 0 offen sc1', 'NON')
        self.ts(2)
        RD = 80
        PV, ZV = 128, 130
        p(f'ds_read_b32 v{PV}, v{FA+12}\nds_read_b32 v{PV+1}, v{FA+13}', 'F0')
        for i in range(3):
            for k in range(4): p(f'ds_read_b128 {vr(RD + 16*i + 4*k, 4)}, v{FA + 4*i + k}', f'F{i}')
        p(f'ds_read_b32 v{ZV}, v{ZA} offset:8192\nds_read_b32 v{ZV+1}, v{ZA} offset:{8192+4096}', 'Z')
        p(f'ds_read_b32 v{ZV+2}, v{ZA+1} offset:24576\nds_read_b32 v{ZV+3}, v{ZA+1} offset:{24576+4096}', 'Z')
        p(f's_and_b32 s{t0}, s{S_WAVE}, 2\nv_or_b32 v{a}, s{t0}, v{g}\nv_cmp_eq_u32 vcc, 0, v{a}')
        FT, FO = 136, 144
        for i in range(3):
            p.wait(lg=f'F{i}')
            if i == 0: p(f'v_cndmask_b32 v{PV}, v{PV}, v{ZERO}, vcc\nv_cndmask_b32 v{PV+1}, v{PV+1}, v{ZERO}, vcc')
            A_, B_, C_, D_ = (RD + 16 * i + 4 * k for k in range(4))
            for k in range(8):
                p(f'v_lshlrev_b32 v{FT+k}, 16, v{A_ + k//2}' if k % 2 == 0 else f'v_and_b32 v{FT+k}, 0xffff0000, v{A_ + k//2}')
            for k in range(8): p(f'v_dot2c_f32_bf16 v{FT+k}, s{sSEL + k % 2}, v{B_ + k//2}')
            for w_, (src, prev) in enumerate(((C_, PV if i == 0 else C_ - 16), (D_, PV + 1 if i == 0 else D_ - 16))):
                for k in range(8):
                    if k == 0: p(f'v_dot2c_f32_bf16 v{FT}, s{sSEL + 2 + 2*w_}, v{prev}')
                    else:
                        el = 8 - k
                        p(f'v_dot2c_f32_bf16 v{FT+k}, s{sSEL + 2 + 2*w_ + el % 2}, v{src + el//2}')
            for k in range(4): p(f'v_cvt_pk_bf16_f32 v{FO + 4*i + k}, v{FT+2*k}, v{FT+2*k+1}')
            p(f'ds_write_b128 v{FW}, {vr(FO + 4*i, 4)} offset:{1024*i}')
        ZF = 156
        p.wait(lg='Z')
        p(f'v_cmp_eq_u32 vcc, 0, v{g}')
        for mt in range(2):
            p(f'v_lshlrev_b32 v{a}, 16, v{ZV+mt}\nv_dot2c_f32_bf16 v{a}, s{sSEL}, v{ZV+2+mt}\nv_mov_b32 v{ZF+2*mt+1}, 0')
            p(f'v_cndmask_b32 v{a}, v{ZERO}, v{a}, vcc\nv_cvt_pk_bf16_f32 v{ZF+2*mt}, v{a}, 0')
        p.wait(lg='all')
        p('s_barrier')
        self.ts(3)
        XF, G1 = 80, 160
        for pp in range(5):
            for mt in range(2): p(f'ds_read_b128 {vr(XF + 20*mt + 4*pp, 4)}, v{L16} offset:{FBUF + (5*mt + pp) * 1024}', f'XF{pp}')
        for tl in range(3):
            for mt in range(2):
                p(f'v_mfma_f32_16x16x16_bf16 {vr(G1 + 8*tl + 4*mt, 4)}, {vr(ZF + 2*mt, 2)}, {vr(MX + 22*tl, 2)}, 0')
        for pp in range(5):
            p.wait(lg=f'XF{pp}')
            for tl in range(3):
                for mt in range(2):
                    ac = vr(G1 + 8 * tl + 4 * mt, 4)
                    p(f'v_mfma_f32_16x16x32_bf16 {ac}, {vr(XF + 20*mt + 4*pp, 4)}, {vr(MX + 22*tl + 2 + 4*pp, 4)}, {ac}')
        F2, G2 = 124, 80
        for tl in range(3):
            for k in range(4): p(f'v_cvt_pk_bf16_f32 v{F2 + 4*tl + k}, v{G1 + 8*tl + 2*k}, v{G1 + 8*tl + 2*k + 1}')
        for tl in range(3):
            for rt in range(2):
                p(f'v_mfma_f32_16x16x32_bf16 {vr(G2 + 8*tl + 4*rt, 4)}, {vr(F2 + 4*tl, 4)}, {vr(AL + 4*rt, 4)}, 0')
        for tl in range(3):
            for rt in range(2):
                s_ = G2 + 8 * tl + 4 * rt; r = 136 + 4 * tl + 2 * rt
                p(f'v_cvt_pk_bf16_f32 v{r}, v{s_}, v{s_+1}\nv_cvt_pk_bf16_f32 v{r+1}, v{s_+2}, v{s_+3}')
                p(f'ds_write_b64 v{SW_}, {vr(r, 2)} offset:{rt * 6400 + tl * 128}')
        p.wait(lg='all')
        p('s_barrier')
        for i in range(3): p(f'ds_read_b128 {vr(80 + 4*i, 4)}, v{SR_} offset:{128*i}', f'S{i}')
        p(f'ds_read_b64 v[92:93], v{XR_}', 'S3')
        for i in range(3):
            p.wait(lg=f'S{i}')
            p(f's_mov_b32 s{t0}, {i * 65536}')
            p(f'buffer_store_dwordx4 {vr(80 + 4*i, 4)}, v{SG_ if i < 2 else SG2}, {sr(SWS,4)}, s{t0} offen sc1')
        lsk = self.lab('noex')
        p.wait(lg='all')
        p(f's_cmp_lg_u32 s{sPAR}, 0\ns_cbranch_scc1 {lsk}')
        p(f'buffer_store_dwordx2 v[92:93], v{XG_}, {sr(SWS,4)}, 0 offen sc1')
        p(f'{lsk}:')
        self.ts(4)
        p.wait(vm='all')
        self.get_nonce(NON, ZERO, sN, sCNT)
        p(f'v_mov_b32 v{NON}, s{sN}')
        p('s_barrier')
        lsk = self.lab('noflagb')
        p(f's_cmp_lg_u32 s{S_WAVE}, 0\ns_cbranch_scc1 {lsk}')
        p(f's_lshl_b32 s{t0}, s{sS2}, 7\ns_lshl_b32 s{t1}, s{sCLS}, 2\ns_add_u32 s{t0}, s{t0}, s{t1}\ns_add_u32 s{t0}, s{t0}, {WS_FG}\ns_mov_b64 exec, 1')
        p(f'buffer_store_dword v{NON}, v{ZERO}, {sr(SWS,4)}, s{t0} offen sc1')
        p(f's_mov_b64 exec, -1\n{lsk}:')
        self.ts(5)
        lb2 = self.lab('b2')
        p(f's_cmp_lt_u32 s{S_ID}, 80\ns_cbranch_scc1 {lb2}')
        self.ts_store()
        p(f's_endpgm\n{lb2}:')

        p.vm = []; p.lg = []
        EXL, ST2 = 32768, 40960
        p(f's_and_b32 s{sKAP}, s{S_ID}, 15\ns_lshr_b32 s{sDU}, s{S_ID}, 4')
        sT = 64
        p(f's_lshl_b32 s{t0}, s{S_WAVE}, 9\ns_add_u32 s{t0}, s{t0}, s{sKAP}\ns_and_b32 s{t1}, s{S_WAVE}, 1\ns_lshl_b32 s{t1}, s{t1}, 9')
        p(f's_lshr_b32 s{t2}, s{S_WAVE}, 1\ns_lshl_b32 s{t2}, s{t2}, 4\ns_add_u32 s{t1}, s{t1}, s{t2}\ns_cmp_eq_u32 s{sKAP}, 0\ns_cselect_b32 s{sT}, s{t1}, s{t0}')
        FC, FS, FX = 4, 20, 36
        p(f'v_lshl_add_u32 v{a}, v{n}, 5, s{sT}\nv_cvt_f32_u32 v{a}, v{a}\nv_mul_f32 v{a}, {fh(1/2048)}, v{a}')
        p(f'v_cvt_f32_u32 v{e}, v{g}\nv_mul_f32 v{e}, 4.0, v{e}\nv_mul_f32 v{c}, v{a}, v{e}\nv_add_f32 v{d}, {fh(0.25)}, v{c}')
        for h, bs in enumerate((c, d)):
            for jj in range(2):
                for i in range(8): p(f'v_fmamk_f32 v{TT+i}, v{a}, {fh(float(32*jj + (i if i < 4 else 12 + i)))}, v{bs}')
                for i in range(8): p(f'v_cos_f32 v{TT+i}, v{TT+i}')
                for i in range(4): p(f'v_cvt_pk_bf16_f32 v{FC + 8*h + 4*jj + i}, v{TT+2*i}, v{TT+2*i+1}')
        lk0, lk1, lkd = self.lab('k0'), self.lab('k0hi'), self.lab('kd')
        for i in range(4): p(f'v_mov_b32 v{FX+i}, 0')
        p(f's_cmp_eq_u32 s{sKAP}, 0\ns_cbranch_scc1 {lk0}')
        for i in range(16): p(f'v_mov_b32 v{FS+i}, v{FC+i}')
        p(f's_branch {lkd}\n{lk0}:\ns_cmp_ge_u32 s{S_WAVE}, 2\ns_cbranch_scc1 {lk1}')
        for i in range(8): p(f'v_mov_b32 v{FS+i}, v{FC+8+i}\nv_mov_b32 v{FC+8+i}, 0\nv_mov_b32 v{FS+8+i}, 0')
        p(f'v_or_b32 v{a}, s{S_WAVE}, v{n}\nv_cmp_eq_u32 vcc, 0, v{a}\nv_mov_b32 v{b}, 0x3f80\nv_mov_b32 v{c}, 1.0')
        for i in range(8): p(f'v_cndmask_b32 v{FC+i}, v{FC+i}, v{b}, vcc')
        for i in range(4): p(f'v_cndmask_b32 v{FX+i}, v{FX+i}, v{c}, vcc')
        p(f's_branch {lkd}\n{lk1}:')
        for i in range(8): p(f'v_mov_b32 v{FS+8+i}, v{FC+8+i}\nv_mov_b32 v{FC+8+i}, v{FC+i}\nv_mov_b32 v{FC+i}, 0\nv_mov_b32 v{FS+i}, 0')
        p(f'{lkd}:')
        GD, GA, XA, S2W, S2X, S2R, S2M, RA = 200, 201, 209, 210, 211, 212, 213, 214
        p(f's_and_b32 s{t0}, s{S_WAVE}, 1\ns_lshl_b32 s{t0}, s{t0}, 2\nv_add_u32 v{a}, s{t0}, v{g}\nv_lshlrev_b32 v{a}, 1, v{a}\nv_xor_b32 v{a}, v{a}, v{n}')
        p(f'v_lshlrev_b32 v{a}, 4, v{a}\nv_lshl_add_u32 v{GD}, v{g}, 8, v{a}')
        p(f'v_lshrrev_b32 v{a}, 2, v0\nv_and_b32 v{b}, 3, v0\nv_lshlrev_b32 v{b}, 3, v{b}\nv_lshl_add_u32 v{b}, v{a}, 8, v{b}\nv_and_b32 v{c}, 7, v{a}')
        for u in range(8): p(f'v_xor_b32 v{d}, {u}, v{c}\nv_lshl_add_u32 v{GA+u}, v{d}, 5, v{b}')
        p(f'v_lshlrev_b32 v{a}, 4, v{a}\nv_add_u32 v{XA}, {EXL}, v{a}')
        p(f's_mul_i32 s{t0}, s{S_WAVE}, 4608\ns_add_u32 s{t0}, s{t0}, {ST2}')
        p(f'v_mul_u32_u24 v{a}, 144, v{n}\nv_add_u32 v{S2X}, s{t0}, v{a}\nv_lshl_add_u32 v{S2W}, v{g}, 4, v{S2X}')
        p(f'v_lshrrev_b32 v{a}, 3, v0\nv_and_b32 v{b}, 7, v0\nv_mul_u32_u24 v{c}, 144, v{a}\nv_add_u32 v{c}, s{t0}, v{c}\nv_lshl_add_u32 v{S2R}, v{b}, 4, v{c}')
        p(f'v_xor_b32 v{d}, 7, v{b}\nv_lshl_add_u32 v{S2M}, v{d}, 4, v{c}')
        p(f's_lshl_b32 s{t0}, s{sDU}, 7\ns_add_u32 s{t1}, s{t0}, 1280\ns_sub_u32 s{t2}, {1280 + 1152}, s{t0}\ns_movk_i32 s{t3}, 2560')
        p(f'v_lshlrev_b32 v{b}, 4, v{b}\nv_lshl_add_u32 v{a}, v{a}, 5, s{sT}')
        for hh in range(2):
            if hh: p(f'v_add_u32 v{a}, 256, v{a}')
            p(f'v_sub_u32 v{c}, 2048, v{a}\nv_and_b32 v{c}, 2047, v{c}')
            p(f'v_mad_u32_u24 v{d}, v{a}, s{t3}, v{b}\nv_mad_u32_u24 v{e}, v{c}, s{t3}, v{b}')
            r = RA + 4 * hh
            if hh == 0:
                p(f'v_cmp_eq_u32 vcc, 0, v{a}\nv_add_u32 v{c}, {1024*2560}, v{d}\nv_add_u32 v{r+3}, s{t2}, v{d}\nv_add_u32 v{r+1}, s{t1}, v{e}')
                p(f'v_cndmask_b32 v{d}, v{d}, v{c}, vcc\nv_cndmask_b32 v{e}, v{e}, v{c}, vcc\nv_add_u32 v{r}, s{t1}, v{d}\nv_add_u32 v{r+2}, s{t2}, v{e}')
            else:
                p(f'v_add_u32 v{r}, s{t1}, v{d}\nv_add_u32 v{r+1}, s{t1}, v{e}\nv_add_u32 v{r+2}, s{t2}, v{e}\nv_add_u32 v{r+3}, s{t2}, v{d}')
        p(f's_mul_i32 s{t0}, s{sKAP}, 5\ns_add_u32 s{t0}, s{t0}, s{sDU}\ns_lshl_b32 s{t1}, s{t0}, 11\ns_lshl_b32 s{t0}, s{t0}, 15')
        p(f's_lshr_b32 s{t2}, s{S_WAVE}, 1\ns_lshl_b32 s{t2}, s{t2}, 14\ns_and_b32 s{t3}, s{S_WAVE}, 1\ns_lshl_b32 s{t3}, s{t3}, 10\ns_add_u32 s{t2}, s{t2}, s{t3}')
        p(f's_add_u32 s{t0}, s{t0}, s{t2}\ns_add_u32 s{t0}, s{t0}, {WS_G}')
        p(f's_lshl_b32 s{t3}, s{S_WAVE}, 9\ns_add_u32 s{t1}, s{t1}, s{t3}\ns_add_u32 s{t1}, s{t1}, {WS_EX}\ns_add_u32 s{t3}, s{t3}, {EXL}')
        p(f'v_lshlrev_b32 v{a}, 7, v0\ns_mov_b32 s65, {WS_FG}')
        self.ts(6)
        l0, l1 = self.lab('pollg'), self.lab('pollg_ok')
        p(f's_mov_b32 s{sCNT}, 0\n{l0}:')
        p(f'buffer_load_dwordx4 v[40:43], v{a}, {sr(SWS,4)}, s65 offen sc1')
        p('s_waitcnt vmcnt(0)')
        p(f'v_xor_b32 v40, v40, v{NON}\nv_xor_b32 v41, v41, v{NON}\nv_xor_b32 v42, v42, v{NON}\nv_xor_b32 v43, v43, v{NON}')
        p(f'v_or3_b32 v40, v40, v41, v42\nv_or_b32 v40, v40, v43\nv_cmp_ne_u32 vcc, 0, v40\ns_add_u32 s{sCNT}, s{sCNT}, 1\ns_cbranch_vccz {l1}')
        p(f's_cmp_gt_u32 s{sCNT}, {SPIN_CAP}\ns_cbranch_scc1 {l1}\ns_sleep 4\ns_branch {l0}\n{l1}:')
        self.ts(7)
        p(f's_mov_b32 m0, s{t3}\ns_mov_b64 exec, {sr(sE32,2)}')
        p(f'buffer_load_dwordx4 v{L16}, {sr(SWS,4)}, s{t1} offen sc1 lds')
        p('s_mov_b64 exec, -1')
        for i in range(8):
            p(f's_add_u32 m0, s{t2}, {2048*i}')
            if i: p(f's_add_u32 s{t0}, s{t0}, 2048')
            p(f'buffer_load_dwordx4 v{GD}, {sr(SWS,4)}, s{t0} offen sc1 lds')
        p.wait(vm='all')
        p('s_barrier')
        self.ts(8)
        AC, GB = 40, [80, 120]

        def greads(j):
            out = []
            for u in range(10):
                for hi in range(2):
                    dst = vr(GB[j & 1] + 4 * u + 2 * hi, 2)
                    if u < 8: out.append((f'ds_read_b64_tr_b16 {dst}, v{GA+u} offset:{(32*j + 16*hi) * 256}', f'G{j}_{u}'))
                    else: out.append((f'ds_read_b64_tr_b16 {dst}, v{XA} offset:{(32*j + 16*hi) * 16 + 8 * (u - 8)}', f'G{j}_{u}'))
            return out
        for x in greads(0): p(*x)
        for j in range(4):
            nx = greads(j + 1) if j < 3 else []
            for u in range(10):
                p.wait(lg=f'G{j}_{u}')
                is_sin = (4 <= u < 8) or u == 9
                F = (FS if is_sin else FC) + 4 * j
                ac = vr(AC + 4 * u, 4)
                first = j == 0 and not is_sin
                p(f'v_mfma_f32_16x16x32_bf16 {ac}, {vr(GB[j & 1] + 4*u, 4)}, {vr(F, 4)}, {0 if first else ac}')
                if j < 2 and not is_sin:
                    a2 = vr(AC + 4 * (u + 4 if u < 4 else 9), 4)
                    p(f'v_mfma_f32_16x16x32_bf16 {a2}, {vr(GB[j & 1] + 4*u, 4)}, {vr(FX, 4)}, {0 if j == 0 else a2}')
                for x in nx[2 * u:2 * u + 2]: p(*x)
        U = 80
        for ud in range(2):
            Pe, Po, Qe, Qo = (AC + 4 * (2 * cl + ud) for cl in range(4))
            r = U + 24 * ud
            for k in range(2):
                p(f'v_pk_add_f32 {vr(r+2*k,2)}, {vr(Pe+2*k,2)}, {vr(Qe+2*k,2)} neg_lo:[0,1] neg_hi:[0,1]')
                p(f'v_pk_add_f32 {vr(r+4+2*k,2)}, {vr(Po+2*k,2)}, {vr(Qo+2*k,2)} neg_lo:[0,1] neg_hi:[0,1]')
                p(f'v_pk_add_f32 {vr(r+8+2*k,2)}, {vr(Pe+2*k,2)}, {vr(Qe+2*k,2)}')
                p(f'v_pk_add_f32 {vr(r+12+2*k,2)}, {vr(Po+2*k,2)}, {vr(Qo+2*k,2)}')
            for k in range(4): p(f'v_cvt_pk_bf16_f32 v{r+16+k}, v{r+k}, v{r+4+k}')
            p(f'ds_write_b128 v{S2W}, {vr(r+16,4)} offset:{64*ud}')
            for k in range(4): p(f'v_cvt_pk_bf16_f32 v{r+20+k}, v{r+8+k}, v{r+12+k}')
            p(f'ds_write_b128 v{S2W}, {vr(r+20,4)} offset:{2304 + 64*ud}')
        p(f'v_sub_f32 v130, v{AC+32}, v{AC+36}\nv_add_f32 v131, v{AC+32}, v{AC+36}\nv_cvt_pk_bf16_f32 v130, v130, v130\nv_cvt_pk_bf16_f32 v131, v131, v131')
        p(f'ds_write_b32 v{S2X}, v130 offset:128\nds_write_b32 v{S2X}, v131 offset:{2304+128}')
        p(f's_mov_b32 s{t0}, 0xffff')
        p.wait(lg='all')
        R = 132
        k = 0
        for hh in range(2):
            for uu in range(2):
                off = uu * 2304 + hh * 8 * 144
                p(f'ds_read_b128 {vr(R + 10*k, 4)}, v{S2R} offset:{off}', f'f{k}')
                p(f'ds_read_b128 {vr(R + 10*k + 4, 4)}, v{S2M} offset:{off}', f'm{k}')
                p(f'ds_read_b32 v{R + 10*k + 8}, v{S2M} offset:{off + 16}', f'm{k}')
                k += 1
        k = 0
        for hh in range(2):
            for uu in range(2):
                p.wait(lg=f'f{k}')
                p(f'buffer_store_dwordx4 {vr(R + 10*k, 4)}, v{RA + 4*hh + uu}, {sr(SOUT,4)}, 0 offen{self.omod}')
                p.wait(lg=f'm{k}')
                D = R + 10 * k + 4; o = 176 + 4 * k
                p(f'v_bfi_b32 v{o}, s{t0}, v{D+4}, v{D+3}\nv_bfi_b32 v{o+1}, s{t0}, v{D+3}, v{D+2}\nv_bfi_b32 v{o+2}, s{t0}, v{D+2}, v{D+1}\nv_bfi_b32 v{o+3}, s{t0}, v{D+1}, v{D}')
                p(f'buffer_store_dwordx4 {vr(o, 4)}, v{RA + 4*hh + 2 + uu}, {sr(SOUT,4)}, 0 offen{self.omod}')
                k += 1
        if self.ts_on:
            self.ts(9)
            p('s_waitcnt vmcnt(0)')
            self.ts(10)
        self.ts_store()
        p('L_exit:\ns_endpgm')

    def build(self):
        self.entry(); self.branchA(); self.branchB()
        hdr = open('cdna_kernels/' + KN + '.s.ref').read().split('; Override launch')[0]
        hdr += '; One launch: workgroups 0..255 run branch A (QKV GEMM -> windowed attention -> hand-off -> output projection),\n'
        hdr += '; workgroups 256..511 run branch B (2-D DFT real part: folded hidden DFT + radix-32 stage -> hand-off -> radix-64 stage).\n'
        hdr += '; @launch grid=(512,1,1) block=(256,1,1) lds=81920\n'
        hdr += f'.amdgcn_target "amdgcn-amd-amdhsa--gfx950"\n.text\n.globl {KN}_kernel\n.p2align 8\n.type {KN}_kernel,@function\n'
        tail = f'''.section .rodata,"a"
.p2align 6
.amdhsa_kernel {KN}_kernel
  .amdhsa_next_free_vgpr 256
  .amdhsa_next_free_sgpr 102
  .amdhsa_accum_offset 256
  .amdhsa_group_segment_fixed_size 0
  .amdhsa_kernarg_size 88
  .amdhsa_user_sgpr_count 2
  .amdhsa_user_sgpr_kernarg_segment_ptr 1
  .amdhsa_system_sgpr_workgroup_id_x 1
  .amdhsa_float_denorm_mode_32 3
.end_amdhsa_kernel
'''
        return hdr + self.p.text() + tail


if __name__ == '__main__':
    import argparse
    ap = argparse.ArgumentParser()
    ap.add_argument('-o', default='cdna_kernels/' + KN + '.s')
    ap.add_argument('--ts', action='store_true')
    ap.add_argument('--rot', default='1,3')
    ap.add_argument('--nomimic', action='store_true')
    ap.add_argument('--prio', type=int, default=0)
    ap.add_argument('--nocodepf', action='store_true')
    ap.add_argument('--calib', type=int, default=0)
    ap.add_argument('--exp', default='')
    ap.add_argument('--omod', default='')
    a = ap.parse_args()
    g = Gen(ts=a.ts, rot=tuple(int(x) for x in a.rot.split(',')), mimic=not a.nomimic, prio=a.prio, codepf=not a.nocodepf, calib=a.calib, exp=a.exp, omod=a.omod)
    s = g.build()
    open(a.o, 'w').write(s)
    print('written', a.o, 'instructions', sum(1 for i in g.p.ins if i.kind != 'none'), 'auto nops', g.p.nops)
```

```python
import sys, math
from asmlib import *

KN = 'concat_heads__sliding_local_dilated__spectral_fnet__prompt'
WS_O, WS_G, WS_EX, WS_FO, WS_TS, WS_SIZE = 0, 0x300000, 0x600000, 0x680000, 0x700000, 0x800000
WS_GC, WS_GO = WS_FO + 256 * 128, WS_FO + 264 * 128
SPIN_CAP = 20000

SX, SW, SWO, SWS, SOUT, SDBG = 20, 24, 28, 32, 36, 40
S_WAVE, S_ID = 18, 19
V_TS = 3


class Gen:
    def __init__(self, ts=False, rot=(1, 3), mimic=True, prio=(0, 1, 0), gsleep=8, pmod='sc1', fill=False, olead=8, remap=True, rot2=True, codepf=True, calib=0, exp='', omod=''):
        self.omod = (' ' + omod.replace('+', ' ')) if omod else ''
        self.calib = calib
        self.exp = exp.split(',')
        self.p = Prog()
        self.ts_on = ts
        self.rot = rot
        self.mimic = mimic
        self.prio = prio
        self.gsleep = gsleep
        self.pmod = pmod.replace('+', ' ')
        self.fill = fill
        self.olead = olead
        self.remap = remap
        self.rot2 = rot2
        self.codepf = codepf
        self.nlab = 0

    def lab(self, s):
        self.nlab += 1
        return f'L_{s}_{self.nlab}'

    def ts(self, k):
        if self.ts_on:
            self.p(f's_memrealtime s[100:101]\ns_waitcnt lgkmcnt(0)\nv_writelane_b32 v{V_TS}, s100, {k}')

    def tc(self, k):
        if self.ts_on:
            self.p(f's_memtime s[100:101]\ns_waitcnt lgkmcnt(0)\nv_writelane_b32 v{V_TS}, s100, {k}')

    def ts_store(self):
        if self.ts_on:
            p = self.p
            p(f's_lshl_b32 s100, s2, 2\ns_add_u32 s100, s100, s{S_WAVE}\ns_lshl_b32 s100, s100, 6\ns_add_u32 s100, s100, {WS_TS}')
            p('v_mbcnt_lo_u32_b32 v1, -1, 0\nv_mbcnt_hi_u32_b32 v1, -1, v1\nv_lshlrev_b32 v1, 2, v1')
            p('s_mov_b64 exec, 0xffff')
            p(f'buffer_store_dword v{V_TS}, v1, {sr(SWS,4)}, s100 offen')
            p('s_mov_b64 exec, -1')

    def srd(self, d, base, nbytes, low=0):
        if low:
            self.p(f's_sub_u32 s{d}, s{base}, {low}\ns_subb_u32 s{d+1}, s{base+1}, 0\ns_and_b32 s{d+1}, s{d+1}, 0xffff\ns_mov_b32 s{d+2}, {nbytes + low}\ns_mov_b32 s{d+3}, 0x20000')
            return
        self.p(f's_mov_b32 s{d}, s{base}\ns_and_b32 s{d+1}, s{base+1}, 0xffff\ns_mov_b32 s{d+2}, {nbytes}\ns_mov_b32 s{d+3}, 0x20000')

    def get_nonce(self, vn, vz, sn, scnt):
        p = self.p
        l0, l1 = self.lab('nonce'), self.lab('nonce_ok')
        p(f's_mov_b32 s{scnt}, 0')
        p(f'{l0}:')
        p(f'v_readfirstlane_b32 s{sn}, v{vn}')
        p(f's_cmp_lg_u32 s{sn}, 0\ns_cbranch_scc1 {l1}')
        p(f's_add_u32 s{scnt}, s{scnt}, 1\ns_cmp_gt_u32 s{scnt}, {SPIN_CAP}\ns_cbranch_scc1 {l1}')
        p('s_sleep 2')
        n0 = len(p.vm)
        p(f'buffer_load_dword v{vn}, v{vz}, {sr(SDBG,4)}, 0 offen sc1')
        p('s_waitcnt vmcnt(0)')
        del p.vm[n0:]
        p(f's_branch {l0}')
        p(f'{l1}:')

    def entry(self):
        p = self.p
        p(f'{KN}_kernel:')
        p('s_cmp_ge_u32 s2, 512\ns_cbranch_scc1 L_exit')
        p('s_load_dwordx4 s[4:7], s[0:1], 0\ns_load_dwordx4 s[8:11], s[0:1], 16\ns_load_dwordx4 s[12:15], s[0:1], 64\ns_load_dwordx2 s[16:17], s[0:1], 80')
        if self.ts_on:
            p(f'v_mov_b32 v{V_TS}, 0\ns_memrealtime s[100:101]')
        if self.calib: p('s_memrealtime s[100:101]')
        p('v_lshrrev_b32 v1, 6, v0\nv_and_b32 v0, 63, v0')
        p(f'v_readfirstlane_b32 s{S_WAVE}, v1')
        p(f's_and_b32 s{S_ID}, s2, 255')
        p('s_cmp_ge_u32 s2, 256\ns_cbranch_scc1 ' + ('L_exit' if 'aonly' in self.exp else 'L_B'))

    def branchA(self):
        p = self.p
        MASK0 = 44
        sQ, sRB, sK, sT, sMW, sMX, sN, sCNT = 66, 67, 68, 69, 70, 71, 86, 87
        sE48, sE32 = 72, 74
        t0, t1, t2, t3 = 76, 77, 78, 79
        sC0 = 80
        sP = 88
        sMO, sRB2, sCB, sOW, sPH = 4, 5, 6, 7, 10
        ACC = 4
        FB = [80, 116]
        WD, XD, XR, WRa, WRb = 224, 228, 231, 233, 234
        EW0, EW1, EWb = 235, 236, 237
        OD = 238
        QK, VA, VB, OS1, OS2 = 243, 244, 245, 246, 247
        WOR, WOR2, L16, ZERO, NON, FLG = 248, 249, 250, 251, 252, 253
        SGW = 254
        SGR, SGG = 152, 155
        a, b, c, d, e, n, g, hh = 160, 161, 162, 163, 164, 165, 166, 167
        XB = 61440
        EXB = 40960

        def acc(sg, t):
            return ACC + 4 * (5 * sg + t) if sg < 3 else ACC + 60 + 4 * (t - 1)

        p(f's_and_b32 s{t0}, s2, 7\ns_lshr_b32 s{t1}, s2, 3')
        p(f's_and_b32 s{t2}, s{t0}, 1\ns_lshl_b32 s{t2}, s{t2}, 2\ns_and_b32 s{t3}, s{t1}, 3\ns_add_u32 s{sQ}, s{t2}, s{t3}')
        p(f's_lshr_b32 s{t0}, s{t0}, 1\ns_lshl_b32 s{t0}, s{t0}, 3\ns_lshr_b32 s{t1}, s{t1}, 2\ns_add_u32 s{sRB}, s{t0}, s{t1}')
        p(f's_mul_i32 s{t0}, s{S_WAVE}, 10\nv_lshrrev_b32 v{g}, 4, v0\nv_add_u32 v{a}, s{t0}, v{g}\nv_xor_b32 v{a}, v{a}, v0\nv_and_b32 v{a}, 7, v{a}')
        p(f'v_lshlrev_b32 v{a}, 4, v{a}\nv_lshrrev_b32 v{b}, 3, v0\nv_mul_u32_u24 v{b}, 2560, v{b}\nv_add_u32 v{a}, v{a}, v{b}\nv_xor_b32 v{b}, 64, v{a}')
        p(f's_mul_i32 s{t1}, s{t1}, {self.rot[0]}\ns_mul_i32 s{t3}, s{t3}, {self.rot[1]}\ns_add_u32 s{t1}, s{t1}, s{t3}')
        p(f's_mul_i32 s{t2}, s{t1}, 26\ns_lshr_b32 s{t2}, s{t2}, 8\ns_mul_i32 s{t2}, s{t2}, 10\ns_sub_u32 s{t1}, s{t1}, s{t2}')
        p(f's_lshl_b32 s{sP}, s{t1}, 7')
        p(f's_lshl_b32 s{t0}, s{S_WAVE}, 3\ns_or_b32 s{t0}, s{t0}, 0x80000\ns_lshl_b32 s{t2}, s{sRB}, 6\ns_sub_u32 s{t2}, s{t2}, 16')
        for i, tb in enumerate(((0, 24, 64, 41), (1, 40, 17, 57), (16, 56, 33, 73))):
            k = sum(v << (8 * j) for j, v in enumerate(tb))
            p(f's_bfe_u32 s{t1}, {k:#x}, s{t0}\ns_add_i32 s{t1}, s{t1}, s{t2}\ns_max_i32 s{t1}, s{t1}, 0\ns_mul_i32 s{t1}, s{t1}, 1280\ns_add_u32 s{t1}, s{t1}, {4096 - 1024 * i}')
            p(f'v_add_u32 v{XD+i}, s{t1}, v{b if i == 1 else a}')
        p(f's_mul_i32 s{sMW}, s{S_WAVE}, 3840\ns_mul_i32 s{sMX}, s{S_WAVE}, 2560\ns_add_u32 s{sMX}, s{sMX}, {XB}')
        p(f's_mov_b32 s{sE48}, -1\ns_mov_b32 s{sE48+1}, 0xffff\ns_mov_b32 s{sE32}, -1\ns_mov_b32 s{sE32+1}, 0')
        p(f's_mul_i32 s{t0}, s{S_WAVE}, 240\ns_mul_i32 s{t1}, s{sQ}, 160\ns_add_u32 s{t1}, s{t1}, 4096\ns_movk_i32 s{t2}, 6554\ns_movk_i32 s{t3}, 2185')
        p(f'v_add_u32 v{a}, s{t0}, v0\nv_lshlrev_b32 v{L16}, 4, v0\nv_lshl_add_u32 v{e}, v{a}, 4, s{t1}')

        def wpat(i):
            if i: p(f'v_add_u32 v{a}, 64, v{a}')
            p(f'v_mul_u32_u24 v{b}, s{t2}, v{a}\nv_mul_u32_u24 v{c}, s{t3}, v{a}\nv_lshrrev_b32 v{b}, 16, v{b}\nv_bfe_u32 v{d}, v{c}, 18, 2\nv_lshrrev_b32 v{c}, 20, v{c}')
            p(f'v_mul_u32_u24 v{b}, 1120, v{b}\nv_mul_u32_u24 v{d}, 15360, v{d}\nv_mul_u32_u24 v{c}, 46080, v{c}\nv_add3_u32 v{b}, v{b}, v{d}, v{e}\nv_sub_u32 v{WD+i}, v{b}, v{c}')
        wpat(0)
        p('s_waitcnt lgkmcnt(0)')
        if self.ts_on: p(f'v_writelane_b32 v{V_TS}, s100, 0')
        self.srd(SX, 4, 2621440, 4096)
        self.srd(SW, 6, 2457600, 4096)
        if self.prio[0]: p(f's_setprio {self.prio[0]}')
        lne = self.lab('noel')
        p(f's_or_b32 s{t0}, s2, s{S_WAVE}\ns_cmp_lg_u32 s{t0}, 0\ns_cbranch_scc1 {lne}')
        self.srd(SWS, 16, WS_SIZE)
        p(f'v_lshlrev_b32 v{c}, 7, v0\nv_mov_b32 v{d}, 0\nv_subrev_u32 v{b}, 8, v0\nv_lshlrev_b32 v{b}, 2, v{b}\nv_add_u32 v{b}, 1024, v{b}')
        p(f'v_cmp_gt_u32 vcc, 8, v0\ns_mov_b32 s{t0}, {WS_FO}\ns_nop 0\nv_cndmask_b32 v{b}, v{b}, v{c}, vcc')
        n0 = len(p.vm)
        for i in range(4):
            if i: p(f's_add_u32 s{t0}, s{t0}, 8192')
            p(f'buffer_store_dword v{d}, v{c}, {sr(SWS,4)}, s{t0} offen sc1')
        p(f's_add_u32 s{t0}, s{t0}, 8192\ns_mov_b64 exec, 0xffff')
        p(f'buffer_store_dword v{d}, v{b}, {sr(SWS,4)}, s{t0} offen sc1')
        p('s_mov_b64 exec, -1')
        del p.vm[n0:]
        p(f'{lne}:')

        def dma_x(P):
            out = []
            for i in range(3):
                s = f's_add_u32 m0, s{sMX}, {(P & 1) * 10240}\n' if i == 0 else ''
                if i == 2: s += f's_mov_b64 exec, {sr(sE32,2)}\n'
                s += f'buffer_load_dwordx4 v{XD + i}, {sr(SX,4)}, s{sP+P} offen offset:{1024*i} lds'
                if i == 2: s += '\ns_mov_b64 exec, -1'
                out.append((s, f'X{P}'))
            return out

        def dma_w(s_):
            out = []
            for i in range(4):
                s = ''
                if i == 0:
                    s += f's_mul_i32 s{sK}, s{sP + (s_ >> 1)}, 1920\n' if s_ % 2 == 0 else f's_add_u32 s{sK}, s{sK}, 122880\n'
                    s += f's_add_u32 m0, s{sMW}, {(s_ & 3) * 15360}\n'
                if i == 3: s += f's_mov_b64 exec, {sr(sE48,2)}\n'
                s += f'buffer_load_dwordx4 v{WD + i}, {sr(SW,4)}, s{sK} offen offset:{1024*i} lds'
                if i == 3: s += '\ns_mov_b64 exec, -1'
                out.append((s, f'W{s_}'))
            return out

        def wo_base(st):
            return [0, 20480, 0, 40960, 61440][st >> 2] + (st & 3) * 5120

        def dma_wo(gr):
            out = []
            for i in range(5):
                s = ''
                if i == 0:
                    s += f's_add_u32 s{sK}, s{sOW}, {gr * 163840}\ns_cmp_ge_u32 s{sK}, 819200\ns_cselect_b32 s{sT}, 819200, 0\ns_sub_u32 s{sK}, s{sK}, s{sT}\n'
                s += f's_add_u32 m0, s{sMO}, {wo_base(4 * gr) + 1024 * i}\n'
                s += f'buffer_load_dwordx4 v{OD+i}, {sr(SWO,4)}, s{sK} offen lds'
                out.append((s, f'WO{gr}'))
            return out

        def nextP(P):
            return f's_add_u32 s{sP+P}, s{sP+P-1}, 128\ns_cmp_ge_u32 s{sP+P}, 1280\ns_cselect_b32 s{t0}, 1280, 0\ns_sub_u32 s{sP+P}, s{sP+P}, s{t0}'

        for s, tg in dma_x(0): p(s, tg)
        for i, x in enumerate(dma_w(0)):
            if i: wpat(i)
            p(*x)
        p(nextP(1)); p(nextP(2)); p(nextP(3))
        p(f'v_and_b32 v{n}, 15, v0\nv_mov_b32 v{ZERO}, 0')
        p(f'v_lshrrev_b32 v{a}, 1, v{n}\nv_xor_b32 v{a}, v{a}, v{g}\nv_lshlrev_b32 v{a}, 4, v{a}\nv_lshl_add_u32 v{a}, v{n}, 7, v{a}')
        p(f'v_add_u32 v{XR}, {XB}, v{a}\nv_xor_b32 v{XR+1}, 64, v{XR}')
        p(f'v_lshrrev_b32 v{a}, 2, v0\nv_and_b32 v{b}, 3, v0\nv_lshlrev_b32 v{b}, 3, v{b}')
        p(f'v_mul_u32_u24 v{c}, 480, v{a}\nv_add_u32 v{c}, v{c}, v{b}')
        p(f's_add_u32 s{t0}, s{S_WAVE}, 1\ns_and_b32 s{t0}, s{t0}, 3\ns_mul_i32 s{t0}, s{t0}, 96\ns_add_u32 s{t0}, s{t0}, 96\ns_lshl_b32 s{t1}, s{S_WAVE}, 5')
        p(f'v_add_u32 v{WRa}, s{t0}, v{c}\nv_add_u32 v{WRb}, s{t1}, v{c}')
        p(f'v_mul_u32_u24 v{c}, 160, v{a}\nv_add_u32 v{WOR}, v{c}, v{b}\nv_add_u32 v{WOR2}, 40960, v{WOR}')
        self.srd(SDBG, 14, 256)
        F = []
        f = lambda txt: F.extend(x for x in txt.split('\n') if x.strip())
        for P in range(4, 10): F.append(nextP(P))
        f(f's_mov_b32 s{SWS}, s16\ns_and_b32 s{SWS+1}, s17, 0xffff\ns_mov_b32 s{SWS+2}, {WS_SIZE}\ns_mov_b32 s{SWS+3}, 0x20000')
        f(f's_mov_b32 s{SWO}, s8\ns_and_b32 s{SWO+1}, s9, 0xffff\ns_mov_b32 s{SWO+2}, 819200\ns_mov_b32 s{SWO+3}, 0x20000')
        f(f's_mov_b32 s{SOUT}, s12\ns_and_b32 s{SOUT+1}, s13, 0xffff\ns_mov_b32 s{SOUT+2}, 5242880\ns_mov_b32 s{SOUT+3}, 0x20000')
        if self.remap:
            f(f's_and_b32 s{t0}, s2, 7\ns_lshl_b32 s{t0}, s{t0}, 2\ns_lshr_b32 s{t1}, s2, 6\ns_add_u32 s{sRB2}, s{t0}, s{t1}\ns_bfe_u32 s{sCB}, s2, 0x30003')
        else:
            f(f's_mov_b32 s{sRB2}, s{sRB}\ns_mov_b32 s{sCB}, s{sQ}')
        if self.rot2:
            F.append(f's_cmp_ge_u32 s{sCB}, 5\ns_cselect_b32 s{t0}, 5, 0\ns_sub_u32 s{sPH}, s{sCB}, s{t0}')
        else:
            f(f's_mov_b32 s{sPH}, 0')
        f(f's_lshl_b32 s{t0}, s{sPH}, 2\ns_add_u32 s{t0}, s{t0}, s{S_WAVE}\ns_mul_i32 s{sOW}, s{t0}, 40960\ns_mul_i32 s{sMO}, s{S_WAVE}, 5120')
        f(f's_movk_i32 s{t1}, 6554\ns_mul_i32 s{t2}, s{sCB}, 160\ns_movk_i32 s{t3}, 1280')
        for i in range(5):
            f(f'v_add_u32 v{a}, {64*i}, v0\nv_mul_u32_u24 v{b}, s{t1}, v{a}\nv_lshrrev_b32 v{b}, 16, v{b}')
            f(f'v_mul_u32_u24 v{c}, 10, v{b}\nv_sub_u32 v{d}, v{a}, v{c}\nv_lshlrev_b32 v{d}, 4, v{d}')
            if i < 3:
                f(f'v_mul_u32_u24 v{c}, 176, v{b}\nv_add_u32 v{SGR+i}, v{c}, v{d}\nv_mul_u32_u24 v{c}, 5120, v{b}\nv_add_u32 v{SGG+i}, v{c}, v{d}')
            f(f'v_add_u32 v{d}, s{t2}, v{d}')
            f(f'v_and_b32 v{c}, 12, v{b}\nv_lshlrev_b32 v{c}, 1, v{c}\nv_bfe_u32 v{e}, v{b}, 4, 1\nv_lshl_add_u32 v{c}, v{e}, 2, v{c}')
            f(f'v_and_b32 v{b}, 3, v{b}\nv_add_u32 v{c}, v{c}, v{b}\nv_mad_u32_u24 v{OD+i}, v{c}, s{t3}, v{d}')
        f(f's_lshl_b32 s{t0}, s{sRB2}, 6\ns_and_b32 s{t1}, s{S_WAVE}, 1\ns_lshl_b32 s{t1}, s{t1}, 5\ns_add_u32 s{t0}, s{t0}, s{t1}')
        f(f's_lshr_b32 s{t1}, s{S_WAVE}, 1\ns_add_u32 s{t0}, s{t0}, s{t1}\ns_mul_i32 s{t0}, s{t0}, 2560\ns_add_u32 s{t0}, s{t0}, s{t2}')
        f(f's_lshl_b32 s{t1}, s{S_WAVE}, 12\ns_add_u32 s{t1}, s{t1}, 20480')
        for i in range(3): f(f'v_add_u32 v{SGR+i}, s{t1}, v{SGR+i}\nv_add_u32 v{SGG+i}, s{t0}, v{SGG+i}')
        f(f'v_lshrrev_b32 v{hh}, 5, v0\nv_lshl_or_b32 v{SGG+2}, v{hh}, 30, v{SGG+2}')
        f(f'v_mul_u32_u24 v{a}, 176, v{n}\nv_lshl_add_u32 v{a}, v{g}, 3, v{a}\nv_add_u32 v{SGW}, s{t1}, v{a}')
        f(f'v_lshlrev_b32 v{FLG}, 7, v0')
        f(f's_add_u32 s{t0}, s{S_WAVE}, 1\ns_and_b32 s{t0}, s{t0}, 3\ns_mul_i32 s{t0}, s{t0}, 96\ns_add_u32 s{t0}, s{t0}, 96\ns_lshl_b32 s{t1}, s{S_WAVE}, 5')
        f(f'v_lshlrev_b32 v{a}, 3, v{g}\nv_add_u32 v{a}, {EXB}, v{a}')
        f(f'v_mul_u32_u24 v{b}, 488, v{n}\nv_add_u32 v{b}, v{b}, v{a}\nv_add_u32 v{c}, {8*488}, v{b}')
        f(f'v_add_u32 v{EW1}, s{t0}, v{c}\nv_add_u32 v{EWb}, s{t1}, v{c}')
        f(f'v_bfe_u32 v{c}, v0, 3, 1\nv_mul_u32_u24 v{c}, {32*488}, v{c}\nv_add_u32 v{b}, v{b}, v{c}\nv_add_u32 v{EW0}, s{t0}, v{b}')
        f(f's_and_b32 s{t0}, s{S_WAVE}, 1\ns_lshr_b32 s{t1}, s{S_WAVE}, 1')
        f(f's_mul_i32 s{t2}, s{t0}, {40*488}\ns_mul_i32 s{t3}, s{t1}, 80\ns_add_u32 s{t2}, s{t2}, s{t3}\ns_add_u32 s{t2}, s{t2}, {EXB}')
        f(f'v_mul_u32_u24 v{a}, 40, v{hh}\nv_add_u32 v{a}, s{t2}, v{a}')
        f(f'v_and_b32 v{b}, 31, v0\nv_mul_u32_u24 v{b}, 488, v{b}\nv_add_u32 v{QK}, v{a}, v{b}')
        f(f'v_and_b32 v{b}, 16, v0\nv_and_b32 v{c}, 3, v0\nv_lshl_add_u32 v{b}, v{c}, 2, v{b}\nv_bfe_u32 v{c}, v0, 2, 2\nv_add_u32 v{b}, v{b}, v{c}')
        f(f'v_mul_u32_u24 v{b}, 488, v{b}\nv_add_u32 v{a}, v{a}, v{b}\nv_add_u32 v{a}, 320, v{a}')
        f(f'v_lshl_add_u32 v{VA}, v{hh}, 3, v{a}\nv_xor_b32 v{c}, 1, v{hh}\nv_lshl_add_u32 v{VB}, v{c}, 5, v{a}')
        f(f's_lshl_b32 s{t2}, s{sRB}, 2\ns_lshl_b32 s{t0}, s{t0}, 1\ns_add_u32 s{t2}, s{t2}, s{t0}\ns_mul_i32 s{t2}, s{t2}, 20480')
        f(f's_mul_i32 s{t3}, s{sQ}, 2560\ns_add_u32 s{t2}, s{t2}, s{t3}\ns_mul_i32 s{t1}, s{t1}, 1280\ns_add_u32 s{t2}, s{t2}, s{t1}')
        f(f'v_and_b32 v{a}, 1, v{g}\nv_mul_u32_u24 v{a}, 20480, v{a}\nv_lshl_add_u32 v{a}, v{n}, 4, v{a}\nv_add_u32 v{a}, s{t2}, v{a}')
        f(f'v_mul_u32_u24 v{b}, 768, v{hh}\nv_add_u32 v{OS1}, v{a}, v{b}\nv_add_u32 v{a}, 512, v{a}\nv_lshl_or_b32 v{OS2}, v{hh}, 30, v{a}')
        F.append(f's_cmp_eq_u32 s{sRB}, 0\ns_cselect_b32 s{t0}, 8, 0')
        f(f'v_and_b32 v{a}, 3, v0\nv_add_u32 v{b}, 1, v{a}\nv_and_b32 v{c}, 28, v0\nv_sub_u32 v{c}, s{t0}, v{c}\nv_max_i32 v{b}, v{b}, v{c}')
        f(f'v_add_u32 v{a}, 8, v{a}\nv_sub_u32 v{a}, v{a}, v{b}')
        for m in range(1, 12):
            f(f'v_sub_u32 v{c}, {m}, v{b}\nv_cmp_le_u32 {sr(MASK0 + 2*(m-1), 2)}, v{c}, v{a}')
        sc = f2u(20 ** -0.5); l2e = f2u(math.log2(math.e))
        if not self.mimic: l2e = f2u(20 ** -0.5 * math.log2(math.e))
        f(f's_mov_b32 s{sC0}, {sc}\ns_mov_b32 s{sC0+1}, {sc}\ns_mov_b32 s{sC0+2}, {l2e}\ns_mov_b32 s{sC0+3}, {l2e}\ns_mov_b32 s{sC0+4}, 0xffff0000\ns_mov_b32 s{sC0+5}, 0xff800000')

        if self.fill:
            for s, tg in dma_w(1) + dma_x(1) + dma_w(2) + dma_w(3): p(s, tg)
        else:
            for x in F: p(x)
            F = []
            for s, tg in dma_w(1) + dma_x(1) + dma_w(2) + dma_w(3): p(s, tg)

        def reads(s_):
            fb = FB[s_ & 1]
            xb = ((s_ >> 1) & 1) * 10240; wb = (s_ & 3) * 15360
            w = lambda sg, hi: (f'ds_read_b64_tr_b16 {vr(fb + 20 + 4*sg + 2*hi, 2)}, v{WRa if sg < 3 else WRb} offset:{wb + hi * 7680 + (32 * sg if sg < 3 else 0)}', f'R{s_}')
            x = lambda t: (f'ds_read_b128 {vr(fb + 4*t, 4)}, v{XR + (s_ & 1)} offset:{xb + t * 2048}', f'R{s_}')
            return [w(0, 0), w(0, 1), x(1), w(1, 0), w(1, 1), x(2), w(2, 0), w(2, 1), x(3), x(4), x(0)], [w(3, 0), w(3, 1)]

        common = [(sg, t) for t in range(1, 5) for sg in range(3)] + [(2, 0)]
        grpA = [(0, 0), (1, 0)]
        grpB = [(3, t) for t in range(1, 5)]

        def mfma(s_, sg, t):
            fb = FB[s_ & 1]; ac = vr(acc(sg, t), 4)
            return f'v_mfma_f32_16x16x32_bf16 {ac}, {vr(fb + 20 + 4*sg, 4)}, {vr(fb + 4*t, 4)}, {ac if s_ else 0}'

        self.ts(1)
        p.wait(vm=['X0', 'W0'])
        p('s_barrier')
        for s, tg in sum(reads(0), []): p(s, tg)
        lne = self.lab('noel2')
        p(f's_or_b32 s{t0}, s2, s{S_WAVE}\ns_cmp_lg_u32 s{t0}, 0\ns_cbranch_scc1 {lne}')
        p(f'v_mov_b32 v168, 1\ns_mov_b64 exec, 1')
        n0 = len(p.vm)
        p(f'buffer_store_dword v168, v{ZERO}, {sr(SDBG,4)}, 0 offen sc1')
        del p.vm[n0:]
        p(f's_mov_b64 exec, -1\n{lne}:')
        p(f's_cmp_eq_u32 s{S_WAVE}, 3\ns_cselect_b64 vcc, -1, 0')
        p.wait(vm=['W1'], lg='all')
        self.ts(2); self.tc(14)
        p('s_barrier')

        CV = FB[0]
        nfill = max(1, -(-len(F) // 15))
        for s_ in range(20):
            dm = []
            if s_ & 1 and (s_ + 3) // 2 <= 9: dm += dma_x((s_ + 3) // 2)
            if s_ + 4 <= 19: dm += dma_w(s_ + 4)
            if s_ == 17: dm += dma_wo(0)
            if s_ == 18: dm += dma_wo(1)
            rd, rd3 = reads(s_ + 1) if s_ < 19 else ([], [])
            slots = [[] for _ in range(13)]
            for i, x in enumerate(dm): slots[(i * 13) // len(dm)].append(x)
            for i, x in enumerate(rd): slots[i + 1].append(x)
            fl, F = F[:nfill], F[nfill:]
            for i, x in enumerate(fl): slots[(i * 13) // len(fl)].append((x, None))
            if s_ < 19:
                for i, (sg, t) in enumerate(common):
                    if 'nomfma' not in self.exp: p(mfma(s_, sg, t))
                    for x in slots[i]:
                        if 'noread' in self.exp and (x[1] or '').startswith('R'): continue
                        p(*x)
                lb = self.lab('skb')
                p(f's_cbranch_vccnz {lb}')
                for i, (sg, t) in enumerate(grpB + grpA):
                    p(mfma(s_, sg, t))
                    if i < 2: p(*rd3[i])
                p(f'{lb}:')
                w = []
                if s_ + 2 <= 19:
                    w.append(f'W{s_+2}')
                    if s_ % 2 == 0: w.append(f'X{(s_+2)//2}')
                p.wait(vm=w or None, lg='all')
                if s_ in (3, 9, 15, 18): self.ts({3: 3, 9: 4, 15: 5, 18: 6}[s_])
                p('s_barrier')
            else:
                assert not F
                ex = lambda tl, i: self.exw(tl, acc, CV, i, EW0, EW1, EWb)
                lb, lb2 = self.lab('skb'), self.lab('skb2')
                p(f's_cbranch_vccnz {lb}')
                for sg, t in grpB + grpA: p(mfma(s_, sg, t))
                p(f'{lb}:')
                for i, (sg, t) in enumerate(common):
                    p(mfma(s_, sg, t))
                    if i == 2:
                        p(f's_cbranch_vccnz {lb2}')
                        for k, x in enumerate(grpB + grpA): ex(x, 13 + k)
                        p(f'{lb2}:')
                    if i >= 3: ex(common[i - 3], i - 3)
                for i in range(10, 13): ex(common[i], i)
        p(f'buffer_load_dword v{NON}, v{ZERO}, {sr(SDBG,4)}, 0 offen sc1', 'NON')
        p.wait(lg='all')
        p('s_barrier')
        self.ts(7)

        Q, K, V, S, T, O, PP = 4, 16, 48, 80, 92, 104, 124
        for cc in range(5):
            p(f'ds_read_b64 {vr(Q + 2*cc, 2)}, v{QK} offset:{8*488 + 8*cc}', 'Q')
            for kb in range(3): p(f'ds_read_b64 {vr(K + 10*kb + 2*cc, 2)}, v{QK} offset:{4*kb*488 + 160 + 8*cc}', f'K{cc}')
        vrd = []
        for t in range(5):
            for kb in range(3):
                ad, off = (VA, 8 * t) if t < 4 else (VB, 0)
                vrd.append(f'ds_read_b64_tr_b16 {vr(V + 6*t + 2*kb, 2)}, v{ad} offset:{4*kb*488 + off}')
        for cc in range(5):
            p.wait(lg=f'K{cc}')
            for kb in range(3):
                s4 = vr(S + 4 * kb, 4)
                p(f'v_mfma_f32_4x4x4_16b_bf16 {s4}, {vr(K + 10*kb + 2*cc, 2)}, {vr(Q + 2*cc, 2)}, {s4 if cc else 0}')
            for x in vrd[3 * cc:3 * cc + 3]: p(x, 'V')
        cS, cL, cM, cI = sr(sC0, 2), sr(sC0 + 2, 2), f's{sC0+4}', f's{sC0+5}'

        def round16(src, dst):
            for i in range(6): p(f'v_cvt_pk_bf16_f32 v{T+i}, v{src+2*i}, v{src+2*i+1}')
            for i in range(6):
                if i: p(f'v_lshlrev_b32 v{dst+2*i}, 16, v{T+i}')
                p(f'v_and_b32 v{dst+2*i+1}, {cM}, v{T+i}')
        p(f'v_mov_b32 v{T+6}, {cI}')
        if self.mimic:
            round16(S, S)
            for i in range(6): p(f'v_pk_mul_f32 {vr(S+2*i,2)}, {vr(S+2*i,2)}, {cS}')
            round16(S, S)
        p(f'v_mov_b32 v{S}, {cI}')
        for m in range(1, 12): p(f'v_cndmask_b32 v{S+m}, v{T+6}, v{S+m}, {sr(MASK0 + 2*(m-1), 2)}')
        p(f'v_max3_f32 v{T}, v{S+1}, v{S+2}, v{S+3}\nv_max3_f32 v{T+1}, v{S+4}, v{S+5}, v{S+6}\nv_max3_f32 v{T+2}, v{S+7}, v{S+8}, v{S+9}')
        p(f'v_max3_f32 v{T}, v{T}, v{S+10}, v{S+11}\nv_max3_f32 v{T}, v{T}, v{T+1}, v{T+2}')
        for i in range(6): p(f'v_pk_add_f32 {vr(S+2*i,2)}, {vr(S+2*i,2)}, {vr(T,2)} op_sel_hi:[1,0] neg_lo:[0,1] neg_hi:[0,1]')
        for i in range(6): p(f'v_pk_mul_f32 {vr(S+2*i,2)}, {vr(S+2*i,2)}, {cL}')
        p(f'v_mov_b32 v{S}, 0')
        for m in range(1, 12): p(f'v_exp_f32 v{S+m}, v{S+m}')
        p(f'v_pk_add_f32 {vr(T,2)}, {vr(S,2)}, {vr(S+2,2)}\nv_pk_add_f32 {vr(T+2,2)}, {vr(S+4,2)}, {vr(S+6,2)}\nv_pk_add_f32 {vr(T+4,2)}, {vr(S+8,2)}, {vr(S+10,2)}')
        p(f'v_pk_add_f32 {vr(T,2)}, {vr(T,2)}, {vr(T+2,2)}\nv_pk_add_f32 {vr(T,2)}, {vr(T,2)}, {vr(T+4,2)}')
        p(f'v_add_f32 v{T}, v{T}, v{T+1}\nv_rcp_f32 v{T}, v{T}')
        for i in range(6): p(f'v_pk_mul_f32 {vr(S+2*i,2)}, {vr(S+2*i,2)}, {vr(T,2)} op_sel_hi:[1,0]')
        for i in range(6): p(f'v_cvt_pk_bf16_f32 v{PP+i}, v{S+2*i}, v{S+2*i+1}')
        p.wait(lg='V')
        for kb in range(3):
            for t in (4, 0, 1, 2, 3):
                o4 = vr(O + 4 * t, 4)
                p(f'v_mfma_f32_4x4x4_16b_bf16 {o4}, {vr(V + 6*t + 2*kb, 2)}, {vr(PP + 2*kb, 2)}, {o4 if kb else 0}')
        OC = 132
        for t in (4, 0, 1, 2, 3):
            dst = OC + 2 * t
            p(f'v_cvt_pk_bf16_f32 v{dst}, v{O+4*t}, v{O+4*t+1}\nv_cvt_pk_bf16_f32 v{dst+1}, v{O+4*t+2}, v{O+4*t+3}')
            if t == 1: p(f'buffer_store_dwordx4 {vr(OC,4)}, v{OS1}, {sr(SWS,4)}, 0 offen sc1', 'OST')
        p(f'buffer_store_dwordx4 {vr(OC+4,4)}, v{OS1}, {sr(SWS,4)}, 0 offen offset:256 sc1', 'OST')
        p(f'v_permlane32_swap_b32 v{OC+8}, v{OC+10}\nv_permlane32_swap_b32 v{OC+9}, v{OC+11}')
        p(f'buffer_store_dwordx4 {vr(OC+8,4)}, v{OS2}, {sr(SWS,4)}, 0 offen sc1', 'OST')
        for i in range(6): p(f'v_mov_b32 v{224+i}, v{SGR+i}')
        SGR, SGG = 224, 227
        p.wait(vm=['WO1', 'NON'])
        self.ts(8)
        p('s_barrier')
        OF, WR, DB, AC2 = 4, 144, 84, 124
        dm = dma_wo(3) + dma_wo(4)

        def wo_reads(st, dst):
            out = []
            base = wo_base(st); ad = WOR
            if base >= 40960: base -= 40960; ad = WOR2
            for tl in range(5):
                for hi in range(2):
                    out.append((f'ds_read_b64_tr_b16 {vr(dst + 4*tl + 2*hi, 2)}, v{ad} offset:{base + hi * 2560 + tl * 32}', f'WOR{st}_{tl}'))
            return out
        rr = []
        for st in range(4): rr += wo_reads(st, WR + 20 * st)
        for i, x in enumerate(dm):
            p(*x)
            for y in rr[4 * i:4 * i + 4]: p(*y)
        self.get_nonce(NON, ZERO, sN, sCNT)
        p(f'v_mov_b32 v{NON}, s{sN}')
        p(f's_lshl_b32 s{t1}, s{sRB}, 3\ns_add_u32 s{t1}, s{t1}, s{sQ}\ns_lshl_b32 s{t1}, s{t1}, 7\ns_add_u32 s{t1}, s{t1}, {WS_FO}')
        p(f's_lshl_b32 s{t0}, s{sRB2}, 10\ns_add_u32 s{t0}, s{t0}, {WS_FO}')
        p(f's_lshl_b32 s{t2}, s{sRB2}, 2\ns_add_u32 s{t2}, s{t2}, s{S_WAVE}\ns_mul_i32 s{t2}, s{t2}, 20480')
        for q in range(5):
            p(f's_add_u32 s{t3}, s{sPH}, {q}\ns_cmp_ge_u32 s{t3}, 5\ns_cselect_b32 s{sT}, 5, 0\ns_sub_u32 s{t3}, s{t3}, s{sT}\ns_lshl_b32 s{t3}, s{t3}, 12\ns_add_u32 s{sP+q}, s{t3}, s{t2}')
        p.wait(vm='OST', lg='all')
        self.ts(9)
        p('s_barrier')
        lsk = self.lab('noflag')
        p(f's_cmp_lg_u32 s{S_WAVE}, 0\ns_cbranch_scc1 {lsk}\ns_mov_b64 exec, 1')
        n0 = len(p.vm)
        p(f'buffer_store_dword v{NON}, v{ZERO}, {sr(SWS,4)}, s{t1} offen sc1')
        del p.vm[n0:]
        p(f's_mov_b64 exec, -1\n{lsk}:')
        for x in dma_wo(2): p(*x)
        for x in wo_reads(4, DB) + wo_reads(5, DB + 20): p(*x)
        l0, l1 = self.lab('pollo'), self.lab('pollo_ok')
        p(f's_mov_b32 s{sCNT}, 0\ns_mov_b64 exec, 0xff\n{l0}:')
        p(f'buffer_load_dword v1, v{FLG}, {sr(SWS,4)}, s{t0} offen sc1', 'POLL')
        p('s_waitcnt vmcnt(0)')
        p(f'v_cmp_ne_u32 vcc, v1, v{NON}\ns_add_u32 s{sCNT}, s{sCNT}, 1\ns_cbranch_vccz {l1}')
        p(f's_cmp_gt_u32 s{sCNT}, {SPIN_CAP}\ns_cbranch_scc1 {l1}\ns_sleep 1\ns_branch {l0}\n{l1}:\ns_mov_b64 exec, -1')
        oload = lambda j: p(f'buffer_load_dwordx4 {vr(OF + 4*j, 4)}, v{L16}, {sr(SWS,4)}, s{sP + j // 4} offen offset:{1024 * (j % 4)} sc1', f'O{j}')
        LA = self.olead
        for j in range(LA): oload(j)
        self.ts(10)
        bufs = [WR, WR + 20, WR + 40, WR + 60, DB, DB + 20]
        for j in range(20):
            src = bufs[j % 6]
            p.wait(vm=f'O{j}')
            if j == 6: p.wait(lg='WOR7_4'); p('s_barrier')
            nx = wo_reads(j + 2, bufs[(j + 2) % 6]) if 4 <= j < 18 else []
            for tl in range(5):
                ac = vr(AC2 + 4 * tl, 4)
                if j >= 4: p.wait(lg=f'WOR{j}_{tl}')
                p(f'v_mfma_f32_16x16x32_bf16 {ac}, {vr(src + 4*tl, 4)}, {vr(OF + 4*j, 4)}, {ac if j else 0}')
                if tl == 0 and j + LA < 20: oload(j + LA)
                for x in nx[2 * tl:2 * tl + 2]: p(*x)
        self.ts(11); self.tc(15)
        for tl in range(5):
            p(f'v_cvt_pk_bf16_f32 v{4+2*tl}, v{AC2+4*tl}, v{AC2+4*tl+1}\nv_cvt_pk_bf16_f32 v{5+2*tl}, v{AC2+4*tl+2}, v{AC2+4*tl+3}')
            p(f'ds_write_b64 v{SGW}, {vr(4+2*tl, 2)} offset:{32*tl}')
        p.wait(lg='all')
        for i in range(3): p(f'ds_read_b128 {vr(16+4*i, 4)}, v{SGR+i}', f'SG{i}')
        for i in range(3):
            p.wait(lg=f'SG{i}')
            p(f'buffer_store_dwordx4 {vr(16+4*i, 4)}, v{SGG+i}, {sr(SOUT,4)}, 0 offen{self.omod}')
        if self.ts_on:
            p('s_waitcnt vmcnt(0)')
            self.ts(12)
        self.ts_store()
        if self.calib:
            p(f's_add_u32 s100, s100, {self.calib}\nL_cal:\ns_memrealtime s[98:99]\ns_waitcnt lgkmcnt(0)\ns_sub_u32 s98, s98, s100\ns_cmp_lt_i32 s98, 0\ns_cbranch_scc1 L_cal')
        p('s_endpgm')

    def exw(self, tile, acc, CV, i, EW0, EW1, EWb):
        sg, t = tile
        r = CV + 2 * i if i < 18 else 158
        ac = acc(sg, t)
        self.p(f'v_cvt_pk_bf16_f32 v{r}, v{ac}, v{ac+1}\nv_cvt_pk_bf16_f32 v{r+1}, v{ac+2}, v{ac+3}')
        rowoff = [0, 0, 16, 40, 56][t] * 488
        if sg == 3: ad, off = EWb, rowoff
        elif t == 0: ad, off = EW0, 32 * sg
        else: ad, off = EW1, rowoff + 32 * sg
        self.p(f'ds_write_b64 v{ad}, {vr(r, 2)} offset:{off}')

    def branchB(self):
        p = self.p
        p.vm = []; p.lg = []
        sCLS, sS2, sTYP, sPAR, sN, sCNT = 44, 45, 46, 47, 48, 49
        sSEL = 50
        t0, t1, t2, t3 = 56, 57, 58, 59
        sE32 = 60
        sKAP, sDU = 62, 63
        a, b, c, d, e = 240, 241, 242, 243, 244
        n, g, ZERO, NON, L16 = 245, 246, 247, 248, 249
        FBUF, STG = 41472, 53248
        XS = 1296
        p('L_B:')
        p(f's_and_b32 s{t0}, s2, 7\ns_lshr_b32 s{t1}, s{S_ID}, 3\ns_and_b32 s{sCLS}, s{t1}, 3\ns_lshr_b32 s{t1}, s{t1}, 2')
        p(f's_lshl_b32 s{t0}, s{t0}, 3\ns_add_u32 s{sS2}, s{t0}, s{t1}\ns_lshr_b32 s{sTYP}, s{sCLS}, 1\ns_and_b32 s{sPAR}, s{sCLS}, 1')
        p(f'v_and_b32 v{n}, 15, v0\nv_lshrrev_b32 v{g}, 4, v0\nv_mov_b32 v{ZERO}, 0\nv_lshlrev_b32 v{L16}, 4, v0')
        p(f's_lshl_b32 s{t0}, s{S_WAVE}, 9\ns_add_u32 s{t0}, s{t0}, s{sS2}\ns_mul_i32 s{t0}, s{t0}, 1280\ns_mul_i32 s{t1}, s{S_WAVE}, {8 * XS}')
        p(f's_mov_b32 s{t2}, -1\ns_mov_b32 s{t3}, 0xff')
        p('s_waitcnt lgkmcnt(0)')
        if self.ts_on: p(f'v_writelane_b32 v{V_TS}, s100, 0')
        self.srd(SX, 10, 2621440)
        if self.prio[1]: p(f's_setprio {self.prio[1]}')
        p(f's_mov_b32 m0, s{t1}\ns_mov_b64 exec, s[{t2}:{t3}]')
        for r in range(8):
            if r: p(f's_add_u32 m0, m0, {XS}\ns_add_u32 s{t0}, s{t0}, 81920')
            p(f'buffer_load_dwordx4 v{L16}, {sr(SX,4)}, s{t0} offen lds', 'X')
            p(f'buffer_load_dwordx4 v{L16}, {sr(SX,4)}, s{t0} offen offset:640 lds', 'X')
        p('s_mov_b64 exec, -1')
        if self.prio[1] != self.prio[2]: p(f's_setprio {self.prio[2]}')
        if self.codepf:
            lsk = self.lab('nopf')
            p(f's_cmp_lg_u32 s{S_WAVE}, 3\ns_cbranch_scc1 {lsk}')
            p(f's_getpc_b64 s[{t2}:{t3}]\nL_pc:')
            p(f's_lshr_b32 s{t0}, s{S_ID}, 3\ns_lshl_b32 s{t0}, s{t0}, 10\ns_sub_u32 s{t0}, s{t0}, L_pc-{KN}_kernel')
            p(f'v_and_b32 v{a}, 7, v0\nv_lshlrev_b32 v{a}, 7, v{a}\nv_add_u32 v{a}, s{t0}, v{a}\nv_min_i32 v{a}, L_exit-L_pc, v{a}')
            p(f'v_ashrrev_i32 v{b}, 31, v{a}\nv_mov_b32 v{c}, s{t3}\nv_add_co_u32 v{a}, vcc, s{t2}, v{a}\nv_addc_co_u32 v{b}, vcc, v{b}, v{c}, vcc')
            n0 = len(p.vm)
            p(f'global_load_dword v255, v[{a}:{b}], off')
            del p.vm[n0:]
            p(f'{lsk}:')
        self.srd(SWS, 16, WS_SIZE)
        self.srd(SOUT, 12, 5242880)
        self.srd(SDBG, 14, 256)
        p(f's_mov_b32 s{sE32}, -1\ns_mov_b32 s{sE32+1}, 0')
        p(f's_xor_b32 s{t2}, s{sPAR}, s{sTYP}')
        for i, s in enumerate((sPAR, sTYP, t2)):
            p(f's_lshl_b32 s{t0}, s{s}, 15\ns_or_b32 s{sSEL+2*i}, s{t0}, 0x3f80\ns_lshl_b32 s{sSEL+2*i+1}, s{sSEL+2*i}, 16')
        FAf, FAr, ZA, FW = 200, 201, 202, 216
        RB = 37 * 16
        p(f's_and_b32 s{t0}, s{S_WAVE}, 1\ns_mul_i32 s{t2}, s{t0}, {16 * XS}\ns_and_b32 s{t1}, s{S_WAVE}, 2')
        p(f'v_mul_u32_u24 v{ZA}, {XS}, v{n}\nv_add_u32 v{d}, s{t2}, v{ZA}')
        p(f'v_mul_u32_u24 v{e}, 5, v{g}\nv_add_u32 v{e}, s{t1}, v{e}\nv_lshlrev_b32 v{e}, 4, v{e}')
        p(f'v_add_u32 v{FAf}, v{d}, v{e}\nv_sub_u32 v{FAr}, v{d}, v{e}\nv_add_u32 v{FAr}, {RB}, v{FAr}')
        p(f's_mul_i32 s{t0}, s{t0}, 5120\ns_lshl_b32 s{t1}, s{t1}, 10\ns_add_u32 s{t0}, s{t0}, s{t1}\ns_add_u32 s{t0}, s{t0}, {FBUF}')
        p(f'v_add_u32 v{FW}, s{t0}, v{L16}')
        MX = 4
        TT = 220
        CH = 80
        p(f's_lshl_b32 s{t0}, s{S_WAVE}, 5\ns_add_u32 s{t0}, s{t0}, s{sPAR}\ns_mul_i32 s{t1}, s{sTYP}, {fh(0.25)}')
        p(f'v_lshl_add_u32 v{a}, v{n}, 1, s{t0}\nv_cvt_f32_u32 v{a}, v{a}\nv_cvt_f32_u32 v{e}, v{g}\nv_mul_f32 v{e}, {fh(40.0)}, v{e}')
        for tl in range(3):
            base = MX + 22 * tl; ch = CH + 8 * tl
            if tl: p(f'v_add_f32 v{a}, {fh(128.0)}, v{a}')
            p(f'v_mul_f32 v{c}, {fh(1/640)}, v{a}\nv_fma_f32 v{ch+2}, v{c}, v{e}, s{t1}\nv_add_f32 v{ch}, v{c}, v{c}')
            p(f'v_add_f32 v{ch+3}, v{ch+2}, v{c}\nv_add_f32 v{ch+4}, v{ch+2}, v{ch}\nv_add_f32 v{ch+5}, v{ch+3}, v{ch}')
            p(f'v_mul_f32 v{b}, {fh(0.25)}, v{a}\nv_add_f32 v{b}, s{t1}, v{b}')
            p(f'v_cos_f32 v{ch}, v{ch}\nv_cos_f32 v{b}, v{b}')
            for i in range(2, 6): p(f'v_cos_f32 v{ch+i}, v{ch+i}')
            p(f'v_add_f32 v{ch}, v{ch}, v{ch}\nv_mov_b32 v{base+1}, 0\nv_cvt_pk_bf16_f32 v{base}, v{b}, 0')
        for m in range(20):
            for tl in range(3):
                base = MX + 22 * tl; ch = CH + 8 * tl
                cur = ch + 2 + 2 * (m % 3)
                if 1 <= m < 19:
                    p(f'v_pk_fma_f32 {vr(ch + 2 + 2*((m+1) % 3), 2)}, {vr(ch, 2)}, {vr(cur, 2)}, {vr(ch + 2 + 2*((m-1) % 3), 2)} op_sel_hi:[0,1,1] neg_lo:[0,0,1] neg_hi:[0,0,1]')
                p(f'v_cvt_pk_bf16_f32 v{base + 2 + m}, v{cur}, v{cur+1}')
        AL = 72
        p(f's_cmp_eq_u32 s{sTYP}, 0\ns_cselect_b32 s{t0}, 0, {fh(0.25)}\ns_cselect_b32 s{t1}, {fh(-0.25)}, 0')
        p(f'v_cvt_f32_u32 v{e}, v{g}\nv_mul_f32 v{e}, 4.0, v{e}\nv_and_b32 v{b}, 1, v{n}\nv_cmp_eq_u32 vcc, 1, v{b}\nv_mov_b32 v{c}, s{t0}\nv_mov_b32 v{d}, s{t1}')
        p(f'v_cndmask_b32 v{c}, v{c}, v{d}, vcc\nv_bfe_i32 v{TT+4}, v0, 1, 1\nv_and_b32 v{TT+4}, 0x80008000, v{TT+4}')
        for rt in (1, 0):
            p(f'v_lshrrev_b32 v{a}, 1, v{n}')
            if rt: p(f'v_add_u32 v{a}, 8, v{a}')
            else: p(f'v_lshlrev_b32 v{b}, 4, v{b}\nv_cmp_eq_u32 vcc, 0, v{a}\ns_nop 1\nv_cndmask_b32 v{a}, v{a}, v{b}, vcc\nv_cndmask_b32 v{c}, v{c}, v{ZERO}, vcc')
            p(f'v_cvt_f32_u32 v{a}, v{a}\nv_mul_f32 v{a}, {fh(1/32)}, v{a}\nv_fma_f32 v{TT}, v{a}, v{e}, v{c}')
            p(f'v_add_f32 v{TT+1}, v{TT}, v{a}\nv_fma_f32 v{TT+2}, v{a}, 2.0, v{TT}\nv_fma_f32 v{TT+3}, v{a}, 2.0, v{TT+1}')
            for i in range(4): p(f'v_cos_f32 v{TT+i}, v{TT+i}')
            for i in range(2): p(f'v_cvt_pk_bf16_f32 v{AL + 4*rt + i}, v{TT+2*i}, v{TT+2*i+1}')
            for i in range(2): p(f'v_xor_b32 v{AL + 4*rt + 2 + i}, v{AL + 4*rt + i}, v{TT+4}')
        SW_, SR_, SG_, XR_, XG_ = 217, 218, 219, 228, 229
        p(f's_lshl_b32 s{t0}, s{S_WAVE}, 5\ns_add_u32 s{t0}, s{t0}, {STG}')
        p(f'v_mul_u32_u24 v{a}, 400, v{n}\nv_lshl_add_u32 v{a}, v{g}, 3, v{a}\nv_add_u32 v{SW_}, s{t0}, v{a}')
        p(f's_lshl_b32 s{t0}, s{S_WAVE}, 3\nv_lshrrev_b32 v{a}, 3, v0\nv_add_u32 v{a}, s{t0}, v{a}\nv_and_b32 v{b}, 7, v0')
        p(f'v_mul_u32_u24 v{c}, 400, v{a}\nv_add_u32 v{c}, {STG}, v{c}\nv_lshl_add_u32 v{SR_}, v{b}, 4, v{c}')
        p(f'v_lshrrev_b32 v{c}, 1, v{a}\nv_mul_u32_u24 v{c}, 5, v{c}\nv_and_b32 v{a}, 1, v{a}\nv_lshlrev_b32 v{a}, 6, v{a}\nv_add_u32 v{a}, s{sS2}, v{a}')
        p(f'v_lshrrev_b32 v{d}, 2, v{b}\nv_add_u32 v{d}, v{d}, v{c}\nv_lshlrev_b32 v{d}, 15, v{d}\nv_lshl_add_u32 v{d}, v{a}, 8, v{d}')
        p(f's_lshl_b32 s{t0}, s{sCLS}, 6\ns_add_u32 s{t0}, s{t0}, {WS_G}\nv_and_b32 v{e}, 3, v{b}\nv_lshl_add_u32 v{d}, v{e}, 4, v{d}\nv_add_u32 v{SG_}, s{t0}, v{d}')
        SG2 = 230
        p(f'v_bfe_u32 v{e}, v0, 2, 1\nv_lshl_or_b32 v{SG2}, v{e}, 30, v{SG_}')
        p(f's_lshl_b32 s{t0}, s{S_WAVE}, 3\nv_and_b32 v{a}, 7, v0\nv_add_u32 v{a}, s{t0}, v{a}\nv_mul_u32_u24 v{c}, 400, v{a}\nv_add_u32 v{XR_}, {STG + 320}, v{c}')
        p(f's_lshl_b32 s{t0}, s{sS2}, 4\ns_add_u32 s{t0}, s{t0}, {WS_EX}\nv_lshl_add_u32 v{XG_}, v{a}, 10, s{t0}')
        self.ts(1)
        p.wait(vm='all')
        if 'bxonly' in self.exp: p('s_endpgm')
        p('s_barrier')
        p(f'buffer_load_dword v{NON}, v{ZERO}, {sr(SDBG,4)}, 0 offen sc1', 'NON')
        self.ts(2)
        RD = 80
        PV, ZV = 128, 130
        p(f'ds_read_b32 v{PV}, v{FAr} offset:{80*16 - RB}\nds_read_b32 v{PV+1}, v{FAr} offset:{40*16 - RB}', 'F0')
        for i in range(3):
            for k, (ad, off) in enumerate(((FAf, 16*i), (FAf, 640 + 16*i), (FAr, (79-i)*16 - RB), (FAr, (39-i)*16 - RB))):
                p(f'ds_read_b128 {vr(RD + 16*i + 4*k, 4)}, v{ad} offset:{off}', f'F{i}')
        p(f'ds_read_b32 v{ZV}, v{ZA} offset:320\nds_read_b32 v{ZV+1}, v{ZA} offset:{16*XS + 320}', 'Z')
        p(f'ds_read_b32 v{ZV+2}, v{ZA} offset:960\nds_read_b32 v{ZV+3}, v{ZA} offset:{16*XS + 960}', 'Z')
        p(f's_and_b32 s{t0}, s{S_WAVE}, 2\nv_or_b32 v{a}, s{t0}, v{g}\nv_cmp_eq_u32 vcc, 0, v{a}')
        FT, FO = 136, 144
        for i in range(3):
            p.wait(lg=f'F{i}')
            if i == 0: p(f'v_cndmask_b32 v{PV}, v{PV}, v{ZERO}, vcc\nv_cndmask_b32 v{PV+1}, v{PV+1}, v{ZERO}, vcc')
            A_, B_, C_, D_ = (RD + 16 * i + 4 * k for k in range(4))
            for k in range(8):
                p(f'v_lshlrev_b32 v{FT+k}, 16, v{A_ + k//2}' if k % 2 == 0 else f'v_and_b32 v{FT+k}, 0xffff0000, v{A_ + k//2}')
            for k in range(8): p(f'v_dot2c_f32_bf16 v{FT+k}, s{sSEL + k % 2}, v{B_ + k//2}')
            for w_, (src, prev) in enumerate(((C_, PV if i == 0 else C_ - 16), (D_, PV + 1 if i == 0 else D_ - 16))):
                for k in range(8):
                    if k == 0: p(f'v_dot2c_f32_bf16 v{FT}, s{sSEL + 2 + 2*w_}, v{prev}')
                    else:
                        el = 8 - k
                        p(f'v_dot2c_f32_bf16 v{FT+k}, s{sSEL + 2 + 2*w_ + el % 2}, v{src + el//2}')
            for k in range(4): p(f'v_cvt_pk_bf16_f32 v{FO + 4*i + k}, v{FT+2*k}, v{FT+2*k+1}')
            p(f'ds_write_b128 v{FW}, {vr(FO + 4*i, 4)} offset:{1024*i}')
        ZF = 156
        p.wait(lg='Z')
        p(f'v_cmp_eq_u32 vcc, 0, v{g}')
        for mt in range(2):
            p(f'v_lshlrev_b32 v{a}, 16, v{ZV+mt}\nv_dot2c_f32_bf16 v{a}, s{sSEL}, v{ZV+2+mt}\nv_mov_b32 v{ZF+2*mt+1}, 0')
            p(f'v_cndmask_b32 v{a}, v{ZERO}, v{a}, vcc\nv_cvt_pk_bf16_f32 v{ZF+2*mt}, v{a}, 0')
        p.wait(lg='all')
        p('s_barrier')
        self.ts(3)
        XF, G1 = 80, 160
        for pp in range(5):
            for mt in range(2): p(f'ds_read_b128 {vr(XF + 20*mt + 4*pp, 4)}, v{L16} offset:{FBUF + (5*mt + pp) * 1024}', f'XF{pp}')
        for tl in range(3):
            for mt in range(2):
                p(f'v_mfma_f32_16x16x16_bf16 {vr(G1 + 8*tl + 4*mt, 4)}, {vr(ZF + 2*mt, 2)}, {vr(MX + 22*tl, 2)}, 0')
        for pp in range(5):
            p.wait(lg=f'XF{pp}')
            for tl in range(3):
                for mt in range(2):
                    ac = vr(G1 + 8 * tl + 4 * mt, 4)
                    p(f'v_mfma_f32_16x16x32_bf16 {ac}, {vr(XF + 20*mt + 4*pp, 4)}, {vr(MX + 22*tl + 2 + 4*pp, 4)}, {ac}')
        F2, G2 = 124, 80
        for tl in range(3):
            for k in range(4): p(f'v_cvt_pk_bf16_f32 v{F2 + 4*tl + k}, v{G1 + 8*tl + 2*k}, v{G1 + 8*tl + 2*k + 1}')
        for tl in range(3):
            for rt in range(2):
                p(f'v_mfma_f32_16x16x32_bf16 {vr(G2 + 8*tl + 4*rt, 4)}, {vr(F2 + 4*tl, 4)}, {vr(AL + 4*rt, 4)}, 0')
        for tl in range(3):
            for rt in range(2):
                s_ = G2 + 8 * tl + 4 * rt; r = 136 + 4 * tl + 2 * rt
                p(f'v_cvt_pk_bf16_f32 v{r}, v{s_}, v{s_+1}\nv_cvt_pk_bf16_f32 v{r+1}, v{s_+2}, v{s_+3}')
                p(f'ds_write_b64 v{SW_}, {vr(r, 2)} offset:{rt * 6400 + tl * 128}')
        p.wait(lg='all')
        p('s_barrier')
        if 'nogst' in self.exp: p('s_endpgm')
        for i in range(3): p(f'ds_read_b128 {vr(80 + 4*i, 4)}, v{SR_} offset:{128*i}', f'S{i}')
        p(f'ds_read_b128 v[92:95], v{XR_}', 'S3')
        for i in range(3):
            p.wait(lg=f'S{i}')
            p(f's_mov_b32 s{t0}, {i * 65536}')
            p(f'buffer_store_dwordx4 {vr(80 + 4*i, 4)}, v{SG_ if i < 2 else SG2}, {sr(SWS,4)}, s{t0} offen sc1')
        lsk = self.lab('noex')
        p.wait(lg='all')
        p(f's_cmp_lg_u32 s{sCLS}, 0\ns_cbranch_scc1 {lsk}\ns_mov_b64 exec, 0xff')
        p(f'buffer_store_dwordx4 v[92:95], v{XG_}, {sr(SWS,4)}, 0 offen sc1')
        p(f's_mov_b64 exec, -1\n{lsk}:')
        self.ts(4)
        p.wait(vm='all')
        self.get_nonce(NON, ZERO, sN, sCNT)
        p(f'v_mov_b32 v{NON}, s{sN}')
        p('s_barrier')
        lsk = self.lab('noflagb')
        p(f's_cmp_lg_u32 s{S_WAVE}, 0\ns_cbranch_scc1 {lsk}')
        p(f's_and_b32 s{t0}, s{S_ID}, 7\ns_lshl_b32 s{t1}, s{t0}, 7\ns_add_u32 s{t1}, s{t1}, {WS_GC}\ns_lshl_b32 s{t0}, s{t0}, 2\ns_add_u32 s{t0}, s{t0}, {WS_GO}')
        p(f's_mov_b64 exec, 1\nv_mov_b32 v{a}, 1')
        p(f'buffer_atomic_add v{a}, v{ZERO}, {sr(SWS,4)}, s{t1} offen sc0 sc1')
        p(f's_waitcnt vmcnt(0)\nv_cmp_eq_u32 vcc, 31, v{a}\ns_and_b64 exec, exec, vcc\ns_cbranch_execz {lsk}')
        p(f'buffer_store_dword v{NON}, v{ZERO}, {sr(SWS,4)}, s{t0} offen sc1')
        p(f'{lsk}:\ns_mov_b64 exec, -1')
        self.ts(5)
        lb2 = self.lab('b2')
        p(f's_cmp_lt_u32 s{S_ID}, {0 if "nob2" in self.exp else 80}\ns_cbranch_scc1 {lb2}')
        self.ts_store()
        p(f's_endpgm\n{lb2}:')

        p.vm = []; p.lg = []
        EXL, ST2 = 32768, 40960
        p(f's_and_b32 s{sKAP}, s{S_ID}, 15\ns_lshr_b32 s{sDU}, s{S_ID}, 4')
        sT = 64
        p(f's_lshl_b32 s{t0}, s{S_WAVE}, 9\ns_add_u32 s{t0}, s{t0}, s{sKAP}\ns_and_b32 s{t1}, s{S_WAVE}, 1\ns_lshl_b32 s{t1}, s{t1}, 9')
        p(f's_lshr_b32 s{t2}, s{S_WAVE}, 1\ns_lshl_b32 s{t2}, s{t2}, 4\ns_add_u32 s{t1}, s{t1}, s{t2}\ns_cmp_eq_u32 s{sKAP}, 0\ns_cselect_b32 s{sT}, s{t1}, s{t0}')
        FC, FS, FX = 4, 20, 36
        p(f'v_lshl_add_u32 v{a}, v{n}, 5, s{sT}\nv_cvt_f32_u32 v{a}, v{a}\nv_mul_f32 v{a}, {fh(1/2048)}, v{a}')
        p(f'v_cvt_f32_u32 v{e}, v{g}\nv_mul_f32 v{e}, 4.0, v{e}\nv_mul_f32 v{c}, v{a}, v{e}\nv_add_f32 v{d}, {fh(0.25)}, v{c}')
        for h, bs in enumerate((c, d)):
            for jj in range(2):
                for i in range(8): p(f'v_fmamk_f32 v{TT+i}, v{a}, {fh(float(32*jj + (i if i < 4 else 12 + i)))}, v{bs}')
                for i in range(8): p(f'v_cos_f32 v{TT+i}, v{TT+i}')
                for i in range(4): p(f'v_cvt_pk_bf16_f32 v{FC + 8*h + 4*jj + i}, v{TT+2*i}, v{TT+2*i+1}')
        lk0, lk1, lkd = self.lab('k0'), self.lab('k0hi'), self.lab('kd')
        for i in range(4): p(f'v_mov_b32 v{FX+i}, 0')
        p(f's_cmp_eq_u32 s{sKAP}, 0\ns_cbranch_scc1 {lk0}')
        for i in range(16): p(f'v_mov_b32 v{FS+i}, v{FC+i}')
        p(f's_branch {lkd}\n{lk0}:\ns_cmp_ge_u32 s{S_WAVE}, 2\ns_cbranch_scc1 {lk1}')
        for i in range(8): p(f'v_mov_b32 v{FS+i}, v{FC+8+i}\nv_mov_b32 v{FC+8+i}, 0\nv_mov_b32 v{FS+8+i}, 0')
        p(f'v_or_b32 v{a}, s{S_WAVE}, v{n}\nv_cmp_eq_u32 vcc, 0, v{a}\nv_mov_b32 v{b}, 0x3f80\nv_mov_b32 v{c}, 1.0')
        for i in range(8): p(f'v_cndmask_b32 v{FC+i}, v{FC+i}, v{b}, vcc')
        for i in range(4): p(f'v_cndmask_b32 v{FX+i}, v{FX+i}, v{c}, vcc')
        p(f's_branch {lkd}\n{lk1}:')
        for i in range(8): p(f'v_mov_b32 v{FS+8+i}, v{FC+8+i}\nv_mov_b32 v{FC+8+i}, v{FC+i}\nv_mov_b32 v{FC+i}, 0\nv_mov_b32 v{FS+i}, 0')
        p(f'{lkd}:')
        GD, GA, XA, S2W, S2X, S2R, S2M, RA = 200, 201, 209, 210, 211, 212, 213, 214
        p(f's_and_b32 s{t0}, s{S_WAVE}, 1\ns_lshl_b32 s{t0}, s{t0}, 2\nv_add_u32 v{a}, s{t0}, v{g}\nv_lshlrev_b32 v{a}, 1, v{a}\nv_xor_b32 v{a}, v{a}, v{n}')
        p(f'v_lshlrev_b32 v{a}, 4, v{a}\nv_lshl_add_u32 v{GD}, v{g}, 8, v{a}')
        p(f'v_lshrrev_b32 v{a}, 2, v0\nv_and_b32 v{b}, 3, v0\nv_lshlrev_b32 v{b}, 3, v{b}\nv_lshl_add_u32 v{b}, v{a}, 8, v{b}\nv_and_b32 v{c}, 7, v{a}')
        for u in range(8): p(f'v_xor_b32 v{d}, {u}, v{c}\nv_lshl_add_u32 v{GA+u}, v{d}, 5, v{b}')
        p(f'v_lshlrev_b32 v{a}, 5, v{a}\nv_add_u32 v{XA}, {EXL}, v{a}')
        p(f's_mul_i32 s{t0}, s{S_WAVE}, 4608\ns_add_u32 s{t0}, s{t0}, {ST2}')
        p(f'v_mul_u32_u24 v{a}, 144, v{n}\nv_add_u32 v{S2X}, s{t0}, v{a}\nv_lshl_add_u32 v{S2W}, v{g}, 4, v{S2X}')
        p(f'v_lshrrev_b32 v{a}, 3, v0\nv_and_b32 v{b}, 7, v0\nv_mul_u32_u24 v{c}, 144, v{a}\nv_add_u32 v{c}, s{t0}, v{c}\nv_lshl_add_u32 v{S2R}, v{b}, 4, v{c}')
        p(f'v_xor_b32 v{d}, 7, v{b}\nv_lshl_add_u32 v{S2M}, v{d}, 4, v{c}')
        p(f's_lshl_b32 s{t0}, s{sDU}, 7\ns_add_u32 s{t1}, s{t0}, 1280\ns_sub_u32 s{t2}, {1280 + 1152}, s{t0}\ns_movk_i32 s{t3}, 2560')
        p(f'v_lshlrev_b32 v{b}, 4, v{b}\nv_lshl_add_u32 v{a}, v{a}, 5, s{sT}')
        for hh in range(2):
            if hh: p(f'v_add_u32 v{a}, 256, v{a}')
            p(f'v_sub_u32 v{c}, 2048, v{a}\nv_and_b32 v{c}, 2047, v{c}')
            p(f'v_mad_u32_u24 v{d}, v{a}, s{t3}, v{b}\nv_mad_u32_u24 v{e}, v{c}, s{t3}, v{b}')
            r = RA + 4 * hh
            if hh == 0:
                p(f'v_cmp_eq_u32 vcc, 0, v{a}\nv_add_u32 v{c}, {1024*2560}, v{d}\nv_add_u32 v{r+3}, s{t2}, v{d}\nv_add_u32 v{r+1}, s{t1}, v{e}')
                p(f'v_cndmask_b32 v{d}, v{d}, v{c}, vcc\nv_cndmask_b32 v{e}, v{e}, v{c}, vcc\nv_add_u32 v{r}, s{t1}, v{d}\nv_add_u32 v{r+2}, s{t2}, v{e}')
            else:
                p(f'v_add_u32 v{r}, s{t1}, v{d}\nv_add_u32 v{r+1}, s{t1}, v{e}\nv_add_u32 v{r+2}, s{t2}, v{e}\nv_add_u32 v{r+3}, s{t2}, v{d}')
        XD2 = 222
        p(f's_mul_i32 s{t0}, s{sKAP}, 5\ns_add_u32 s{t0}, s{t0}, s{sDU}\ns_lshl_b32 s{t0}, s{t0}, 15\ns_lshl_b32 s{t1}, s{S_WAVE}, 5')
        p(f'v_lshrrev_b32 v{a}, 1, v0\nv_add_u32 v{a}, s{t1}, v{a}\nv_and_b32 v{b}, 1, v0\ns_add_u32 s{t1}, s{t0}, {WS_G + 32768}\ns_lshl_b32 s{t2}, s{sKAP}, 11\ns_add_u32 s{t2}, s{t2}, {WS_EX}')
        p(f'v_lshlrev_b32 v{c}, 7, v{b}\nv_lshl_add_u32 v{c}, v{a}, 8, v{c}\nv_add_u32 v{c}, s{t1}, v{c}\nv_lshl_add_u32 v{d}, v{a}, 4, s{t2}\nv_lshl_or_b32 v{d}, v{b}, 30, v{d}')
        p(f's_cmp_eq_u32 s{sDU}, 4\ns_cselect_b64 vcc, -1, 0\nv_cndmask_b32 v{XD2}, v{c}, v{d}, vcc')
        p(f's_lshr_b32 s{t2}, s{S_WAVE}, 1\ns_lshl_b32 s{t2}, s{t2}, 14\ns_and_b32 s{t3}, s{S_WAVE}, 1\ns_lshl_b32 s{t3}, s{t3}, 10\ns_add_u32 s{t2}, s{t2}, s{t3}')
        p(f's_add_u32 s{t0}, s{t0}, s{t2}\ns_add_u32 s{t0}, s{t0}, {WS_G}')
        p(f's_lshl_b32 s{t3}, s{S_WAVE}, 10\ns_add_u32 s{t3}, s{t3}, {EXL}')
        p(f's_mov_b32 s65, {WS_GO}\nv_lshlrev_b32 v{a}, 2, v0')
        self.ts(6)
        l0, l1 = self.lab('pollg'), self.lab('pollg_ok')
        p(f's_cmp_lg_u32 s{S_WAVE}, {9 if "nopoll" in self.exp else 0}\ns_cbranch_scc1 {l1}')
        p(f's_mov_b32 s{sCNT}, 0\ns_mov_b64 exec, 0xff\n{l0}:')
        p(f'buffer_load_dword v40, v{a}, {sr(SWS,4)}, s65 offen {self.pmod}')
        p('s_waitcnt vmcnt(0)')
        p(f'v_cmp_ne_u32 vcc, v40, v{NON}\ns_add_u32 s{sCNT}, s{sCNT}, 1\ns_cbranch_vccz {l1}')
        p(f's_cmp_gt_u32 s{sCNT}, {SPIN_CAP}\ns_cbranch_scc1 {l1}\ns_sleep {self.gsleep}\ns_branch {l0}\n{l1}:\ns_mov_b64 exec, -1\ns_barrier')
        self.ts(7)
        if 'pollonly' in self.exp: self.ts_store(); p('s_endpgm')
        p(f's_mov_b32 m0, s{t3}')
        p(f'buffer_load_dwordx4 v{XD2}, {sr(SWS,4)}, 0 offen sc1 lds')
        for i in range(8):
            p(f's_add_u32 m0, s{t2}, {2048*i}')
            if i: p(f's_add_u32 s{t0}, s{t0}, 2048')
            p(f'buffer_load_dwordx4 v{GD}, {sr(SWS,4)}, s{t0} offen sc1 lds')
        p.wait(vm='all')
        p('s_barrier')
        self.ts(8)
        AC, GB = 40, [80, 120]

        def greads(j):
            out = []
            for u in range(10):
                for hi in range(2):
                    dst = vr(GB[j & 1] + 4 * u + 2 * hi, 2)
                    if u < 8: out.append((f'ds_read_b64_tr_b16 {dst}, v{GA+u} offset:{(32*j + 16*hi) * 256}', f'G{j}_{u}'))
                    else: out.append((f'ds_read_b64_tr_b16 {dst}, v{XA} offset:{(32*j + 16*hi) * 32 + 16 * (u - 8)}', f'G{j}_{u}'))
            return out
        for x in greads(0): p(*x)
        for j in range(4):
            nx = greads(j + 1) if j < 3 else []
            for u in range(10):
                p.wait(lg=f'G{j}_{u}')
                is_sin = (4 <= u < 8) or u == 9
                F = (FS if is_sin else FC) + 4 * j
                ac = vr(AC + 4 * u, 4)
                first = j == 0 and not is_sin
                p(f'v_mfma_f32_16x16x32_bf16 {ac}, {vr(GB[j & 1] + 4*u, 4)}, {vr(F, 4)}, {0 if first else ac}')
                if j < 2 and not is_sin:
                    a2 = vr(AC + 4 * (u + 4 if u < 4 else 9), 4)
                    p(f'v_mfma_f32_16x16x32_bf16 {a2}, {vr(GB[j & 1] + 4*u, 4)}, {vr(FX, 4)}, {0 if j == 0 else a2}')
                for x in nx[2 * u:2 * u + 2]: p(*x)
        U = 80
        for ud in range(2):
            Pe, Po, Qe, Qo = (AC + 4 * (2 * cl + ud) for cl in range(4))
            r = U + 24 * ud
            for k in range(2):
                p(f'v_pk_add_f32 {vr(r+2*k,2)}, {vr(Pe+2*k,2)}, {vr(Qe+2*k,2)} neg_lo:[0,1] neg_hi:[0,1]')
                p(f'v_pk_add_f32 {vr(r+4+2*k,2)}, {vr(Po+2*k,2)}, {vr(Qo+2*k,2)} neg_lo:[0,1] neg_hi:[0,1]')
                p(f'v_pk_add_f32 {vr(r+8+2*k,2)}, {vr(Pe+2*k,2)}, {vr(Qe+2*k,2)}')
                p(f'v_pk_add_f32 {vr(r+12+2*k,2)}, {vr(Po+2*k,2)}, {vr(Qo+2*k,2)}')
            for k in range(4): p(f'v_cvt_pk_bf16_f32 v{r+16+k}, v{r+k}, v{r+4+k}')
            p(f'ds_write_b128 v{S2W}, {vr(r+16,4)} offset:{64*ud}')
            for k in range(4): p(f'v_cvt_pk_bf16_f32 v{r+20+k}, v{r+8+k}, v{r+12+k}')
            p(f'ds_write_b128 v{S2W}, {vr(r+20,4)} offset:{2304 + 64*ud}')
        p(f'v_sub_f32 v130, v{AC+32}, v{AC+36}\nv_add_f32 v131, v{AC+32}, v{AC+36}\nv_cvt_pk_bf16_f32 v130, v130, v130\nv_cvt_pk_bf16_f32 v131, v131, v131')
        p(f'ds_write_b32 v{S2X}, v130 offset:128\nds_write_b32 v{S2X}, v131 offset:{2304+128}')
        p(f's_mov_b32 s{t0}, 0xffff')
        p.wait(lg='all')
        R = 132
        k = 0
        for hh in range(2):
            for uu in range(2):
                off = uu * 2304 + hh * 8 * 144
                p(f'ds_read_b128 {vr(R + 10*k, 4)}, v{S2R} offset:{off}', f'f{k}')
                p(f'ds_read_b128 {vr(R + 10*k + 4, 4)}, v{S2M} offset:{off}', f'm{k}')
                p(f'ds_read_b32 v{R + 10*k + 8}, v{S2M} offset:{off + 16}', f'm{k}')
                k += 1
        k = 0
        for hh in range(2):
            for uu in range(2):
                p.wait(lg=f'f{k}')
                p(f'buffer_store_dwordx4 {vr(R + 10*k, 4)}, v{RA + 4*hh + uu}, {sr(SOUT,4)}, 0 offen{self.omod}')
                p.wait(lg=f'm{k}')
                D = R + 10 * k + 4; o = 176 + 4 * k
                p(f'v_bfi_b32 v{o}, s{t0}, v{D+4}, v{D+3}\nv_bfi_b32 v{o+1}, s{t0}, v{D+3}, v{D+2}\nv_bfi_b32 v{o+2}, s{t0}, v{D+2}, v{D+1}\nv_bfi_b32 v{o+3}, s{t0}, v{D+1}, v{D}')
                p(f'buffer_store_dwordx4 {vr(o, 4)}, v{RA + 4*hh + 2 + uu}, {sr(SOUT,4)}, 0 offen{self.omod}')
                k += 1
        if self.ts_on:
            self.ts(9)
            p('s_waitcnt vmcnt(0)')
            self.ts(10)
        self.ts_store()
        p('L_exit:\ns_endpgm')

    def build(self):
        self.entry(); self.branchA(); self.branchB()
        hdr = open('cdna_kernels/' + KN + '.s.ref').read().split('; Override launch')[0]
        hdr += '; One launch: workgroups 0..255 run branch A (QKV GEMM -> windowed attention -> hand-off -> output projection),\n'
        hdr += '; workgroups 256..511 run branch B (2-D DFT real part: folded hidden DFT + radix-32 stage -> hand-off -> radix-64 stage).\n'
        hdr += '; @launch grid=(512,1,1) block=(256,1,1) lds=81920\n'
        hdr += f'.amdgcn_target "amdgcn-amd-amdhsa--gfx950"\n.text\n.globl {KN}_kernel\n.p2align 8\n.type {KN}_kernel,@function\n'
        tail = f'''.section .rodata,"a"
.p2align 6
.amdhsa_kernel {KN}_kernel
  .amdhsa_next_free_vgpr 256
  .amdhsa_next_free_sgpr 102
  .amdhsa_accum_offset 256
  .amdhsa_group_segment_fixed_size 0
  .amdhsa_kernarg_size 88
  .amdhsa_user_sgpr_count 2
  .amdhsa_user_sgpr_kernarg_segment_ptr 1
  .amdhsa_system_sgpr_workgroup_id_x 1
  .amdhsa_float_denorm_mode_32 3
.end_amdhsa_kernel
'''
        return hdr + self.p.text() + tail


if __name__ == '__main__':
    import argparse
    ap = argparse.ArgumentParser()
    ap.add_argument('-o', default='cdna_kernels/' + KN + '.s')
    ap.add_argument('--ts', action='store_true')
    ap.add_argument('--rot', default='1,3')
    ap.add_argument('--nomimic', action='store_true')
    ap.add_argument('--prio', default='0,1,0')
    ap.add_argument('--noremap', action='store_true')
    ap.add_argument('--fill', action='store_true')
    ap.add_argument('--olead', type=int, default=8)
    ap.add_argument('--gsleep', type=int, default=8)
    ap.add_argument('--pmod', default='sc1')
    ap.add_argument('--norot2', action='store_true')
    ap.add_argument('--nocodepf', action='store_true')
    ap.add_argument('--calib', type=int, default=0)
    ap.add_argument('--exp', default='')
    ap.add_argument('--omod', default='sc1')
    a = ap.parse_args()
    g = Gen(ts=a.ts, rot=tuple(int(x) for x in a.rot.split(',')), mimic=not a.nomimic, prio=tuple(int(x) for x in a.prio.split(',')), remap=not a.noremap, fill=a.fill, olead=a.olead, gsleep=a.gsleep, pmod=a.pmod, rot2=not a.norot2, codepf=not a.nocodepf, calib=a.calib, exp=a.exp, omod=a.omod)
    s = g.build()
    open(a.o, 'w').write(s)
    print('written', a.o, 'instructions', sum(1 for i in g.p.ins if i.kind != 'none'), 'auto nops', g.p.nops)
```
